```python
import torch

def _softmax(x, axis=-1):
    return torch.softmax(x, dim=axis)

def _gelu(x):
    return torch.nn.functional.gelu(x, approximate='tanh')

def _silu(x):
    return torch.nn.functional.silu(x)

def _sigmoid(x):
    return torch.sigmoid(x)

def _layernorm(x, axis=-1, eps=1e-05):
    m = x.mean(dim=axis, keepdim=True)
    v = x.var(dim=axis, keepdim=True, unbiased=False)
    return (x - m) / torch.sqrt(v + eps)

def _scatter_add(tgt, idx, src, axis=0):
    return tgt.clone().index_add_(axis, idx, src)

def _segment_sum(src, seg, n):
    out = torch.zeros((n,) + src.shape[1:], dtype=src.dtype)
    return out.index_add_(0, seg, src)

def _pad(x, pw):
    flat = tuple((v for pair in reversed(pw) for v in pair))
    return torch.nn.functional.pad(x, flat)
kernel_name = 'adaLN_cond__compressed_kv_cla__mixer_s_mlp__prompt'

def setup_inputs():

    _w = lambda a: (lambda t: t.to(torch.bfloat16) if t.is_floating_point() else t)(torch.as_tensor(a))

    def _A_setup():
        B, H, Sq, Sk, D, M = (1, 32, 2048, 2048, 128, 640)
        Dc = 4 * D
        return {'x': _w((lambda *s: torch.randn(*s, dtype=torch.bfloat16) * 0.05)(B, Sq, M)), 'c_kv': _w((lambda *s: torch.randn(*s, dtype=torch.bfloat16) * 1.6)(B, Sk, Dc)), 'w_q': _w((lambda *s: torch.randn(*s, dtype=torch.bfloat16) * 0.8)(M, H, D) * M ** (-0.5)), 'w_uk': _w((lambda *s: torch.randn(*s, dtype=torch.bfloat16) * 0.8)(Dc, H, D) * Dc ** (-0.5)), 'w_uv': _w((lambda *s: torch.randn(*s, dtype=torch.bfloat16) * 1.6)(Dc, H, D) * Dc ** (-0.5)), 'w_o': _w((lambda *s: torch.randn(*s, dtype=torch.bfloat16) * 1.6)(H, D, M) * (H * D) ** (-0.5))}
    _A_in = _A_setup()

    def _B_setup():
        B, S, D, F = (1, 2048, 640, 1728)
        return {'x': _w((lambda *s: torch.randn(*s, dtype=torch.bfloat16) * 0.05)(B, S, D)), 'w1': _w((lambda *s: torch.randn(*s, dtype=torch.bfloat16) * 3.2)(D, D) * D ** (-0.5)), 'w2': _w((lambda *s: torch.randn(*s, dtype=torch.bfloat16) * 3.2)(D, D) * D ** (-0.5)), 'w3': _w((lambda *s: torch.randn(*s, dtype=torch.bfloat16) * 3.2)(D, F) * D ** (-0.5)), 'w4': _w((lambda *s: torch.randn(*s, dtype=torch.bfloat16) * 3.2)(F, D) * F ** (-0.5))}
    _B_in = _B_setup()
    return {'A_x': _A_in['x'], 'A_c_kv': _A_in['c_kv'], 'A_w_q': _A_in['w_q'], 'A_w_uk': _A_in['w_uk'], 'A_w_uv': _A_in['w_uv'], 'A_w_o': _A_in['w_o'], 'B_x': _B_in['x'], 'B_w1': _B_in['w1'], 'B_w2': _B_in['w2'], 'B_w3': _B_in['w3'], 'B_w4': _B_in['w4'], 'c': _w((lambda *s: torch.randn(*s, dtype=torch.bfloat16) * 0.1)(1, 640) * 8.0), 'w_mod': _w((lambda *s: torch.randn(*s, dtype=torch.bfloat16) * 0.1)(640, 6 * 640) * 640 ** (-0.5) * 8.0)}

def reference(A_x, A_c_kv, A_w_q, A_w_uk, A_w_uv, A_w_o, B_x, B_w1, B_w2, B_w3, B_w4, c, w_mod):

    def _A_ref(x, c_kv, w_q, w_uk, w_uv, w_o):
        B, Sq, M = (x.shape[0], x.shape[1], x.shape[2])
        Sk = c_kv.shape[1]
        H, D = (w_q.shape[1], w_q.shape[2])
        q = torch.einsum('bqm,mhd->bhqd', x, w_q)
        k = torch.einsum('bkc,chd->bhkd', c_kv, w_uk)
        v = torch.einsum('bkc,chd->bhkd', c_kv, w_uv)
        scores = torch.einsum('bhqd,bhkd->bhqk', q, k) * D ** (-0.5)
        off = Sk - Sq
        qi = torch.arange(Sq)[:, None]
        kj = torch.arange(Sk)[None, :]
        cmask = kj <= qi + off
        scores = torch.where(cmask[None, None], scores, -1000000000.0)
        p = _softmax(scores, axis=-1)
        ctx = torch.einsum('bhqk,bhkd->bhqd', p, v)
        return torch.einsum('bhqd,hdm->bqm', ctx, w_o)

    def _B_ref(x, w1, w2, w3, w4):
        B, S, D = x.shape
        h = _gelu(_layernorm(x, axis=-1) @ w1)
        c = D // 4
        g0 = _pad(h[:, :, 0 * c:1 * c], ((0, 0), (1, 0), (0, 0)))[:, :S, :]
        g1 = _pad(h[:, :, 1 * c:2 * c], ((0, 0), (0, 1), (0, 0)))[:, 1:, :]
        g2 = _pad(h[:, :, 2 * c:3 * c], ((0, 0), (2, 0), (0, 0)))[:, :S, :]
        g3 = _pad(h[:, :, 3 * c:], ((0, 0), (0, 2), (0, 0)))[:, 2:, :]
        hs = torch.concatenate([g0, g1, g2, g3], axis=-1) @ w2
        x1 = x + hs
        h2 = _gelu(_layernorm(x1, axis=-1) @ w3) @ w4
        return x1 + h2
    x = A_x
    mod = (_silu(c) @ w_mod).reshape(c.shape[0], 6, 1, -1)
    sa, ca, ga, sb, cb, gb = (mod[:, 0].clone(), mod[:, 1].clone(), mod[:, 2].clone(), mod[:, 3].clone(), mod[:, 4].clone(), mod[:, 5].clone())
    h = _layernorm(x, axis=-1) * (1 + ca) + sa
    x = x + ga * _A_ref(h, A_c_kv, A_w_q, A_w_uk, A_w_uv, A_w_o)
    h = _layernorm(x, axis=-1) * (1 + cb) + sb
    x = x + gb * _B_ref(h, B_w1, B_w2, B_w3, B_w4)
    return x
```

```python
import re

REG_RE = re.compile(r"\b([vas])(\d+)\b|\b([vas])\[(\d+):(\d+)\]|\b(vcc|exec|m0|scc)\b")

def regs_of(op):
    out = []
    for m in REG_RE.finditer(op):
        if m.group(1):
            out.append((m.group(1), int(m.group(2))))
        elif m.group(3):
            for i in range(int(m.group(4)), int(m.group(5)) + 1):
                out.append((m.group(3), i))
        else:
            out.append((m.group(6), 0))
    return out

TRANS = ("v_exp_f32", "v_log_f32", "v_rcp_f32", "v_rsq_f32", "v_sqrt_f32", "v_sin_f32", "v_cos_f32")

class Ins:
    __slots__ = ("text", "mn", "ops", "kind", "defs", "uses", "srcc", "passes", "dpp", "ab", "sdata", "lds_dma")
    def __init__(self, text):
        self.text = text
        t = text.split(";")[0].strip()
        parts = t.split(None, 1)
        self.mn = parts[0]
        rest = parts[1] if len(parts) > 1 else ""
        ops, cur, d = [], "", 0
        for ch in rest:
            if ch == "[": d += 1
            if ch == "]": d -= 1
            if ch == "," and d == 0:
                ops.append(cur.strip()); cur = ""
            else:
                cur += ch
        if cur.strip(): ops.append(cur.strip())
        self.ops = ops
        mn = self.mn
        self.defs, self.uses, self.srcc, self.ab, self.sdata = [], [], [], [], []
        self.passes = 0
        self.dpp = ("row_" in rest or "quad_perm" in rest or "_dpp" in mn or "wave_" in rest)
        self.lds_dma = False
        R = regs_of
        if mn.startswith("v_mfma"):
            self.kind = "mfma"
            self.passes = 8 if "32x32x16" in mn else 4
            self.defs = R(ops[0]); self.ab = R(ops[1]) + R(ops[2]); self.srcc = R(ops[3])
            self.uses = self.ab + self.srcc
        elif mn.startswith("v_"):
            self.kind = "valu"
            if mn.startswith("v_cmp"):
                self.defs = R(ops[0]); self.uses = sum((R(o) for o in ops[1:]), [])
            elif "permlane" in mn and "swap" in mn:
                self.defs = R(ops[0]) + R(ops[1]); self.uses = list(self.defs)
            elif mn.startswith(("v_add_co", "v_sub_co", "v_addc_co", "v_subb_co", "v_subrev_co")):
                self.defs = R(ops[0]) + R(ops[1]); self.uses = sum((R(o) for o in ops[2:]), [])
            else:
                self.defs = R(ops[0]); self.uses = sum((R(o) for o in ops[1:]), [])
                if mn.startswith(("v_fmac", "v_dot2c", "v_pk_fmac", "v_writelane")) or self.dpp:
                    self.uses += R(ops[0])
                if mn.startswith("v_cndmask") and len(ops) == 3:
                    self.uses.append(("vcc", 0))
        elif mn.startswith("ds_"):
            self.kind = "ds"
            if mn.startswith(("ds_read", "ds_bpermute", "ds_permute", "ds_swizzle")):
                self.defs = R(ops[0]); self.uses = sum((R(o) for o in ops[1:]), [])
            else:
                self.uses = sum((R(o) for o in ops), [])
        elif mn.startswith(("buffer_", "global_")):
            self.kind = "vmem"
            islds = bool(re.search(r"\blds\b", rest)) or "load_lds" in mn
            if islds:
                self.lds_dma = True
                self.uses = sum((R(o) for o in ops), []) + [("m0", 0)]
            elif "load" in mn:
                self.defs = R(ops[0]); self.uses = sum((R(o) for o in ops[1:]), [])
            elif "store" in mn or "atomic" in mn:
                self.uses = sum((R(o) for o in ops), [])
                d = ops[0] if mn.startswith("buffer_") else ops[1]
                if "x4" in mn or "x3" in mn:
                    self.sdata = R(d)
                if "atomic" in mn and "sc0" in rest:
                    self.defs = R(ops[0])
            else:
                pass
        elif mn.startswith("s_"):
            self.kind = "salu"
            if mn in ("s_nop", "s_waitcnt", "s_barrier", "s_endpgm", "s_sleep", "s_setprio") or mn.startswith(("s_cbranch", "s_branch")):
                pass
            elif mn.startswith("s_cmp") or mn.startswith("s_bitcmp"):
                self.uses = sum((R(o) for o in ops), [])
            else:
                self.defs = R(ops[0]) if ops else []
                self.uses = sum((R(o) for o in ops[1:]), [])
        else:
            raise ValueError("unknown instruction: " + text)
    def states(self):
        if self.mn == "s_nop":
            return int(self.ops[0], 0) + 1
        return 1

def required(p, c):
    need = 0
    pd = set(p.defs)
    if p.kind == "valu":
        vd = {r for r in pd if r[0] in "va" and r[0] != "vcc"}
        vd = {r for r in pd if r[0] in ("v", "a")}
        sd = {r for r in pd if r[0] in ("s", "vcc")}
        if c.kind == "mfma" and vd & set(c.uses): need = max(need, 2)
        if c.kind == "valu":
            cu = set(c.uses)
            if p.mn.startswith(TRANS) and not c.mn.startswith(TRANS) and vd & cu: need = max(need, 1)
            if c.dpp and vd & cu: need = max(need, 2)
            if "permlane" in c.mn and vd & cu: need = max(need, 2)
            if c.mn.startswith(("v_readlane", "v_readfirstlane")) and vd & cu: need = max(need, 1)
            if sd & cu:
                need = max(need, 4 if c.mn.startswith(("v_readlane", "v_writelane")) else 2)
        if c.kind == "vmem" and sd & set(c.uses): need = max(need, 5)
        if c.kind == "salu" and sd & set(c.uses): need = max(need, 1)
    if p.kind == "mfma":
        big = p.passes == 8
        if c.kind == "mfma":
            if pd & set(c.ab): need = max(need, 12 if big else 8)
            ov = pd & set(c.srcc)
            if ov and not (list(p.defs) == list(c.srcc) and p.passes == c.passes): need = max(need, 10 if big else 6)
            if (pd & set(c.defs)) and not (list(p.defs) == list(c.srcc)): need = max(need, 10 if big else 6)
        elif c.kind in ("valu", "vmem", "ds"):
            if pd & (set(c.uses) | set(c.defs)): need = max(need, 12 if big else 8)
        if c.kind == "valu" and set(p.srcc) & set(c.defs): need = max(need, 7 if big else 3)
        if c.kind in ("ds", "vmem") and set(p.srcc) & set(c.defs): need = max(need, 7 if big else 3)
    if p.kind == "salu" and ("m0", 0) in pd and c.lds_dma: need = max(need, 1)
    if p.kind == "vmem" and p.sdata and set(p.sdata) & set(c.defs):
        need = max(need, 2 if c.kind == "valu" else 1)
    return need

class Kern:
    def __init__(self, name, grid, block, lds):
        self.name, self.grid, self.block, self.lds = name, grid, block, lds
        self.items = []
        self.nlab = 0
        self.nops_inserted = 0
    def I(self, text):
        for ln in text.split("\n"):
            ln = ln.strip()
            if not ln or ln.startswith(";"): continue
            self.items.append(Ins(ln))
    def label(self, name):
        self.items.append(("label", name))
    def newlabel(self, stem="L"):
        self.nlab += 1
        return "%s_%s_%d" % (self.name, stem, self.nlab)
    def align(self, p2):
        self.items.append(("raw", ".p2align %d" % p2))
    def fix(self, verbose=False):
        MAXD = 20
        items = self.items
        branches = {}
        for it in items:
            if isinstance(it, Ins) and it.mn.startswith(("s_cbranch", "s_branch")):
                branches.setdefault(it.ops[0], []).append(it)
        def pos(obj):
            for i, it in enumerate(items):
                if it is obj: return i
            raise KeyError
        def back(i, dist, c, depth=0, via_branch=False):
            worst = 0
            j = i - 1
            while j >= 0 and dist < MAXD:
                it = items[j]
                if isinstance(it, tuple):
                    if it[0] == "label" and depth < 3:
                        for b in branches.get(it[1], []):
                            worst = max(worst, back(pos(b) + 1, dist, c, depth + 1, True))
                    j -= 1
                    continue
                if it.mn == "s_endpgm": break
                if it.mn == "s_branch" and not (via_branch and j == i - 1): break
                n = required(it, c)
                if n > dist: worst = max(worst, n - dist)
                dist += it.states()
                j -= 1
            return worst
        for _ in range(4):
            changed = False
            i = 0
            while i < len(items):
                it = items[i]
                if isinstance(it, Ins) and (it.kind != "salu" or it.uses):
                    w = back(i, 0, it)
                    if w > 0:
                        changed = True
                        self.nops_inserted += 1
                        if verbose: print("  [%s] nop %d before: %s" % (self.name, w, it.text))
                        while w > 0:
                            n = min(w, 16)
                            items.insert(i, Ins("s_nop %d" % (n - 1))); i += 1; w -= n
                i += 1
            if not changed: break
    def maxreg(self, cls):
        m = -1
        for it in self.items:
            if isinstance(it, Ins):
                for r in it.defs + it.uses:
                    if r[0] == cls: m = max(m, r[1])
        return m
    def text(self):
        s = [".text", ".globl %s" % self.name, ".p2align 8", ".type %s,@function" % self.name, "%s:" % self.name]
        for it in self.items:
            if isinstance(it, Ins): s.append("  " + it.text)
            elif it[0] == "label": s.append(it[1] + ":")
            else: s.append(it[1])
        return "\n".join(s) + "\n"
    def desc(self):
        nv = self.maxreg("v") + 1; na = self.maxreg("a") + 1; ns = self.maxreg("s") + 1
        acc = max(4, (nv + 3) // 4 * 4)
        nfv = acc + na if na > 0 else nv
        assert nfv <= 512 and acc <= 256 and ns <= 102, (nv, na, ns)
        self.nfv = nfv
        return """.section .rodata,"a"
.p2align 6
.amdhsa_kernel %s
  .amdhsa_next_free_vgpr %d
  .amdhsa_next_free_sgpr %d
  .amdhsa_accum_offset %d
  .amdhsa_group_segment_fixed_size 0
  .amdhsa_kernarg_size 128
  .amdhsa_user_sgpr_count 2
  .amdhsa_user_sgpr_kernarg_segment_ptr 1
  .amdhsa_system_sgpr_workgroup_id_x 1
  .amdhsa_float_denorm_mode_32 3
.end_amdhsa_kernel
""" % (self.name, nfv, max(ns, 16), acc)
    def launch(self):
        return "; @launch kernel=%s grid=(%d,1,1) block=(%d,1,1) lds=%d" % (self.name, self.grid, self.block, self.lds)

class Cnt:
    def __init__(self, k, name, maxv):
        self.k, self.name, self.maxv = k, name, maxv
        self.q = []
    def issue(self, tag): self.q.append(tag)
    def need(self, tag):
        idx = [i for i, t in enumerate(self.q) if t == tag]
        if not idx: return None
        return len(self.q) - 1 - idx[-1]
    def wait(self, tag):
        n = self.need(tag)
        if n is None: return
        n = min(n, self.maxv)
        self.k.I("s_waitcnt %s(%d)" % (self.name, n))
        self.q = self.q[len(self.q) - n:] if n > 0 else []
    def waitall(self):
        self.k.I("s_waitcnt %s(0)" % self.name); self.q = []

def vr(b, n=1, c="v"):
    return "%s%d" % (c, b) if n == 1 else "%s[%d:%d]" % (c, b, b + n - 1)
def ar(b, n=1): return vr(b, n, "a")
def sr(b, n=1): return vr(b, n, "s")

def build_file(header, kerns, launches=None):
    s = header
    for k in (launches or kerns): s += k.launch() + "\n"
    s += '.amdgcn_target "amdgcn-amd-amdhsa--gfx950"\n'
    for k in kerns:
        s += k.text()
    for k in kerns:
        s += k.desc()
    return s

import os
DIAG = os.environ.get("DIAG", "0") == "1"
WS_DIAG = 0x8000000
class Stamps:
    def __init__(self, k, sbase, nmax):
        self.k, self.sbase, self.n, self.nmax = k, sbase, 0, nmax
    def stamp(self, real=False):
        if not DIAG: return
        assert self.n < self.nmax
        if os.environ.get("DIAGRT"): real = True
        self.k.I("%s s[%d:%d]" % ("s_memrealtime" if real else "s_memtime", self.sbase + 2 * self.n, self.sbase + 2 * self.n + 1))
        self.n += 1
    def dump(self, srd, swave, vtmp, stmp, nwaves, region=0):
        if not DIAG: return
        I = self.k.I
        I("s_waitcnt vmcnt(0) lgkmcnt(0)")
        self.stamp(); self.stamp(True)
        I("s_waitcnt lgkmcnt(0)")
        I("s_mul_i32 s%d, s2, %d" % (stmp, nwaves))
        I("s_add_u32 s%d, s%d, s%d" % (stmp, stmp, swave))
        I("s_lshl_b32 s%d, s%d, 7" % (stmp, stmp))
        I("s_add_u32 s%d, s%d, 0x%x" % (stmp, stmp, WS_DIAG + region * 0x100000))
        I("v_mov_b32 v%d, s%d" % (vtmp, stmp))
        I("s_mov_b64 exec, 1")
        for i in range(self.n):
            I("v_mov_b32 v%d, s%d" % (vtmp + 1, self.sbase + 2 * i))
            I("buffer_store_dword v%d, v%d, s[%d:%d], 0 offen offset:%d" % (vtmp + 1, vtmp, srd, srd + 3, 4 * i))
        I("s_mov_b64 exec, -1")
```

```python
from fw import *
from layout import *

def srd(k, d, lo, hi, size):
    k.I("s_mov_b32 s%d, s%d" % (d, lo))
    k.I("s_and_b32 s%d, s%d, 0xffff" % (d + 1, hi))
    k.I("s_mov_b32 s%d, 0x%x" % (d + 2, size))
    k.I("s_mov_b32 s%d, 0x20000" % (d + 3))

def wave_sum_to_sgpr(k, v, s):
    for sh in (1, 2, 4, 8):
        k.I("v_add_f32_dpp v%d, v%d, v%d row_ror:%d row_mask:0xf bank_mask:0xf" % (v, v, v, sh))
    k.I("v_add_f32_dpp v%d, v%d, v%d row_bcast:15 row_mask:0xa bank_mask:0xf" % (v, v, v))
    k.I("v_add_f32_dpp v%d, v%d, v%d row_bcast:31 row_mask:0xc bank_mask:0xf" % (v, v, v))
    k.I("v_readlane_b32 s%d, v%d, 63" % (s, v))

BIG = 0x40000000

def gen_k1():
    LDS_RED = 131072
    k = Kern("k1_kernel", 256, 512, 131072 + 2048)
    I = k.I
    vm = Cnt(k, "vmcnt", 63)
    sC, sW, sX, sCc, sWM, sWS, sDBG = 8, 12, 16, 20, 24, 28, 32
    sH, sJ, sWv, sCG, sT0, sT1, sT2, sT3 = 36, 37, 38, 39, 40, 41, 42, 43
    sM0C, sSoC, sSoW = 44, 46, 47
    sMean, sRstd, sSeg, sBig = 48, 49, 50, 51
    sPtr = 52
    sEx = 68
    vAcc = 0
    vCf = 128
    vWf = 160
    vM = 192
    vA = 208
    vSA = 192
    vG = 208
    vX = 224
    vLane, vDC0, vDC1, vDW0, vDW1 = 232, 233, 234, 235, 236
    vCa = 237
    vWa = 239
    vSt = 247
    vT = 248
    vU = 250
    vPoll, vHo0, vHo1, vXo1 = 252, 253, 254, 255
    vTid = vPoll
    L_end = "k1_end"
    I("s_cmp_ge_u32 s2, 256")
    I("s_cbranch_scc1 %s" % L_end)
    st = Stamps(k, 70, 16)
    st.stamp(True); st.stamp()
    I("s_load_dwordx4 s[%d:%d], s[0:1], %d" % (sPtr, sPtr + 3, KA_X))
    I("s_load_dwordx4 s[%d:%d], s[0:1], %d" % (sPtr + 4, sPtr + 7, KA_WUK))
    I("s_load_dwordx4 s[%d:%d], s[0:1], %d" % (sPtr + 8, sPtr + 11, KA_C))
    I("s_load_dwordx4 s[%d:%d], s[0:1], %d" % (sPtr + 12, sPtr + 15, KA_DBG))
    I("v_mov_b32 v%d, v0" % vTid)
    I("v_lshrrev_b32 v%d, 6, v0" % vT)
    I("v_and_b32 v%d, 63, v0" % vLane)
    I("v_readfirstlane_b32 s%d, v%d" % (sWv, vT))
    I("s_and_b32 s%d, s2, 7" % sT0)
    I("s_lshr_b32 s%d, s2, 3" % sT1)
    I("s_and_b32 s%d, s%d, 3" % (sH, sT1))
    I("s_lshl_b32 s%d, s%d, 2" % (sT2, sT0))
    I("s_add_u32 s%d, s%d, s%d" % (sH, sH, sT2))
    I("s_lshr_b32 s%d, s2, 5" % sJ)
    I("s_mul_i32 s%d, s%d, 30" % (sCG, sT0))
    I("s_add_u32 s%d, s%d, s%d" % (sCG, sCG, sT1))
    I("s_cmp_lt_u32 s%d, 30" % sT1)
    I("s_cselect_b32 s%d, 0, 0x%x" % (sBig, BIG))
    I("v_lshrrev_b32 v%d, 2, v%d" % (vT, vLane))
    I("s_lshl_b32 s%d, s%d, 8" % (sT0, sJ))
    I("s_lshl_b32 s%d, s%d, 5" % (sT1, sWv))
    I("s_add_u32 s%d, s%d, s%d" % (sT0, sT0, sT1))
    I("v_add_u32 v%d, s%d, v%d" % (vT, sT0, vT))
    I("v_lshlrev_b32 v%d, 10, v%d" % (vT, vT))
    I("v_lshrrev_b32 v%d, 4, v%d" % (vT + 1, vLane))
    I("v_sub_u32 v%d, 0, v%d" % (vT + 1, vT + 1))
    I("v_xor_b32 v%d, v%d, v%d" % (vT + 1, vT + 1, vLane))
    I("v_and_b32 v%d, 3, v%d" % (vT + 1, vT + 1))
    I("v_lshl_add_u32 v%d, v%d, 4, v%d" % (vDC0, vT + 1, vT))
    I("v_add_u32 v%d, %d, v%d" % (vDC1, 16384 - 1024, vDC0))
    I("v_lshrrev_b32 v%d, 4, v%d" % (vT, vLane))
    I("s_and_b32 s%d, s%d, 1" % (sT0, sWv))
    I("s_lshl_b32 s%d, s%d, 3" % (sT0, sT0))
    I("v_lshlrev_b32 v%d, 1, v%d" % (vT + 1, vT))
    I("v_or_b32 v%d, s%d, v%d" % (vT + 1, sT0, vT + 1))
    I("v_xor_b32 v%d, v%d, v%d" % (vT + 1, vT + 1, vLane))
    I("v_and_b32 v%d, 15, v%d" % (vT + 1, vT + 1))
    I("v_lshlrev_b32 v%d, 4, v%d" % (vT + 1, vT + 1))
    I("v_lshl_add_u32 v%d, v%d, 13, v%d" % (vT, vT, vT + 1))
    I("s_and_b32 s%d, s%d, 3" % (sT0, sWv))
    I("s_lshl_b32 s%d, s%d, 16" % (sT0, sT0))
    I("s_lshl_b32 s%d, s%d, 8" % (sT1, sH))
    I("s_add_u32 s%d, s%d, s%d" % (sT0, sT0, sT1))
    I("v_add_u32 v%d, s%d, v%d" % (vDW0, sT0, vT))
    I("v_add_u32 v%d, %d, v%d" % (vDW1, 32768 - 1024, vDW0))
    I("s_lshl_b32 s%d, s%d, 11" % (sM0C, sWv))
    ROT = int(os.environ.get("ROT", "0"))
    if ROT == 1: I("s_lshr_b32 s45, s2, 3")
    if ROT == 2: I("s_lshr_b32 s45, s2, 4"); I("s_and_b32 s45, s45, 14")
    if ROT == 3: I("s_lshr_b32 s45, s2, 1"); I("s_and_b32 s45, s45, 12")
    I("v_lshrrev_b32 v%d, 1, v0" % vT)
    I("v_mul_u32_u24 v%d, 7680, v%d" % (vT + 1, vT))
    I("v_and_b32 v%d, 1, v0" % vU)
    I("v_lshl_add_u32 v%d, v%d, 4, v%d" % (vT + 1, vU, vT + 1))
    I("s_lshl_b32 s%d, s%d, 5" % (sT2, sCG))
    I("s_add_u32 s%d, s%d, s%d" % (sT2, sT2, sBig))
    I("v_add_u32 v%d, s%d, v%d" % (vT + 1, sT2, vT + 1))
    I("v_lshlrev_b32 v%d, 1, v%d" % (vT, vT))
    I("v_add_u32 v%d, %d, v%d" % (vU, 256 * 7680, vT + 1))
    I("v_add_u32 v%d, %d, v%d" % (vU + 1, 512 * 7680, vT + 1))
    I("s_waitcnt lgkmcnt(0)")
    srd(k, sC, sPtr + 2, sPtr + 3, 2048 * 512 * 2)
    I("s_cmp_lt_u32 s%d, 4" % sWv)
    I("s_cselect_b32 s%d, s%d, s%d" % (sT2, sPtr + 4, sPtr + 6))
    I("s_cselect_b32 s%d, s%d, s%d" % (sT3, sPtr + 5, sPtr + 7))
    srd(k, sW, sT2, sT3, 512 * 4096 * 2)
    def dma(kt):
        stg = (kt % 4) * 32768
        I("s_add_u32 m0, s%d, %d" % (sM0C, stg))
        if ROT:
            I("s_add_u32 s%d, s45, %d" % (sSoW, kt))
            I("s_and_b32 s%d, s%d, 15" % (sSoW, sSoW))
            I("s_lshl_b32 s%d, s%d, 6" % (sSoC, sSoW))
            I("s_lshl_b32 s%d, s%d, 18" % (sSoW, sSoW))
        else:
            I("s_mov_b32 s%d, %d" % (sSoC, kt * 64))
        I("buffer_load_dwordx4 v%d, s[%d:%d], s%d offen lds" % (vDC0, sC, sC + 3, sSoC)); vm.issue("kt%d" % kt)
        I("buffer_load_dwordx4 v%d, s[%d:%d], s%d offen offset:1024 lds" % (vDC1, sC, sC + 3, sSoC)); vm.issue("kt%d" % kt)
        I("s_add_u32 m0, s%d, %d" % (sM0C, stg + 16384))
        if not ROT: I("s_mov_b32 s%d, %d" % (sSoW, kt * 262144))
        I("buffer_load_dwordx4 v%d, s[%d:%d], s%d offen lds" % (vDW0, sW, sW + 3, sSoW)); vm.issue("kt%d" % kt)
        I("buffer_load_dwordx4 v%d, s[%d:%d], s%d offen offset:1024 lds" % (vDW1, sW, sW + 3, sSoW)); vm.issue("kt%d" % kt)
    st.stamp()
    dma(0)
    srd(k, sWM, sPtr + 10, sPtr + 11, 640 * 3840 * 2)
    srd(k, sCc, sPtr + 8, sPtr + 9, 1280)
    srd(k, sX, sPtr + 0, sPtr + 1, 2048 * 640 * 2)
    srd(k, sWS, sPtr + 14, sPtr + 15, WS_SIZE)
    srd(k, sDBG, sPtr + 12, sPtr + 13, 256)
    I("s_barrier")
    dma(1)
    dma(2)
    dma(3)
    st.stamp()
    I("buffer_load_dwordx4 %s, v%d, s[%d:%d], 0 offen" % (vr(vM, 4), vT + 1, sWM, sWM + 3)); vm.issue("mod")
    I("buffer_load_dwordx4 %s, v%d, s[%d:%d], 0 offen" % (vr(vM + 4, 4), vU, sWM, sWM + 3)); vm.issue("mod")
    I("buffer_load_dwordx4 %s, v%d, s[%d:%d], 0 offen" % (vr(vM + 8, 4), vU + 1, sWM, sWM + 3)); vm.issue("mod")
    for i in range(3):
        I("buffer_load_ushort v%d, v%d, s[%d:%d], 0 offen offset:%d" % (vM + 12 + i, vT, sCc, sCc + 3, 512 * i)); vm.issue("mod")
    I("s_lshl_b32 s%d, s2, 3" % sT0)
    I("s_add_u32 s%d, s%d, s%d" % (sT0, sT0, sWv))
    I("s_mul_i32 s%d, s%d, 1280" % (sT1, sT0))
    I("v_lshlrev_b32 v%d, 4, v%d" % (vT, vLane))
    I("v_cmp_gt_u32 vcc, 16, v%d" % vLane)
    I("v_mov_b32 v%d, 0x%x" % (vT + 1, BIG))
    I("v_add_u32 v%d, 1024, v%d" % (vXo1, vT))
    I("v_cndmask_b32 v%d, v%d, v%d, vcc" % (vXo1, vT + 1, vXo1))
    I("buffer_load_dwordx4 %s, v%d, s[%d:%d], s%d offen" % (vr(vX, 4), vT, sX, sX + 3, sT1)); vm.issue("x")
    I("buffer_load_dwordx4 %s, v%d, s[%d:%d], s%d offen" % (vr(vX + 4, 4), vXo1, sX, sX + 3, sT1)); vm.issue("x")
    I("s_lshr_b32 s%d, s%d, 4" % (sT1, sT0))
    I("s_mul_i32 s%d, s%d, 20480" % (sT1, sT1))
    I("s_and_b32 s%d, s%d, 15" % (sT2, sT0))
    I("s_lshl_b32 s%d, s%d, 4" % (sT2, sT2))
    I("s_add_u32 s%d, s%d, s%d" % (sT1, sT1, sT2))
    I("s_add_u32 s%d, s%d, 0x%x" % (sT1, sT1, WS_HF))
    I("v_lshlrev_b32 v%d, 8, v%d" % (vHo0, vLane))
    I("v_add_u32 v%d, s%d, v%d" % (vHo0, sT1, vHo0))
    I("v_add_u32 v%d, 16384, v%d" % (vHo1, vHo0))
    I("v_cndmask_b32 v%d, v%d, v%d, vcc" % (vHo1, vT + 1, vHo1))
    I("v_and_b32 v%d, 15, v%d" % (vT, vLane))
    I("v_lshrrev_b32 v%d, 2, v%d" % (vT + 1, vT))
    I("v_sub_u32 v%d, 0, v%d" % (vT + 1, vT + 1))
    I("v_lshrrev_b32 v%d, 4, v%d" % (vU, vLane))
    I("v_xor_b32 v%d, v%d, v%d" % (vT + 1, vT + 1, vU))
    I("v_and_b32 v%d, 3, v%d" % (vT + 1, vT + 1))
    I("v_lshlrev_b32 v%d, 4, v%d" % (vT + 1, vT + 1))
    I("v_lshl_add_u32 v%d, v%d, 6, v%d" % (vT, vT, vT + 1))
    I("s_lshr_b32 s%d, s%d, 1" % (sT0, sWv))
    I("s_and_b32 s%d, s%d, 1" % (sT0, sT0))
    I("s_lshl_b32 s%d, s%d, 13" % (sT0, sT0))
    I("v_add_u32 v%d, s%d, v%d" % (vCa, sT0, vT))
    I("v_add_u32 v%d, 65536, v%d" % (vCa + 1, vCa))
    I("v_lshrrev_b32 v%d, 2, v%d" % (vT, vLane))
    I("v_and_b32 v%d, 3, v%d" % (vT, vT))
    I("v_lshrrev_b32 v%d, 4, v%d" % (vU, vLane))
    I("v_and_b32 v%d, 1, v%d" % (vU + 1, vU))
    I("v_lshl_add_u32 v%d, v%d, 2, v%d" % (vU + 1, vU + 1, vT))
    I("s_and_b32 s%d, s%d, 1" % (sT0, sWv))
    I("s_lshl_b32 s%d, s%d, 2" % (sT0, sT0))
    I("v_xor_b32 v%d, s%d, v%d" % (vU + 1, sT0, vU + 1))
    I("v_lshlrev_b32 v%d, 5, v%d" % (vU + 1, vU + 1))
    I("v_lshl_add_u32 v%d, v%d, 8, v%d" % (vU + 1, vT, vU + 1))
    I("v_lshl_add_u32 v%d, v%d, 11, v%d" % (vU + 1, vU, vU + 1))
    I("v_and_b32 v%d, 3, v%d" % (vT, vLane))
    I("v_lshl_add_u32 v%d, v%d, 3, v%d" % (vU + 1, vT, vU + 1))
    I("s_lshr_b32 s%d, s%d, 2" % (sT0, sWv))
    I("s_lshl_b32 s%d, s%d, 13" % (sT0, sT0))
    I("s_add_u32 s%d, s%d, 16384" % (sT0, sT0))
    I("v_add_u32 v%d, s%d, v%d" % (vWa, sT0, vU + 1))
    I("v_add_u32 v%d, 65536, v%d" % (vWa + 1, vWa))
    for db in range(1, 4):
        I("v_xor_b32 v%d, %d, v%d" % (vWa + 2 * db, 32 * db, vWa))
        I("v_xor_b32 v%d, %d, v%d" % (vWa + 2 * db + 1, 32 * db, vWa + 1))
    I("s_lshl_b32 s%d, s%d, 6" % (sT0, sH))
    I("s_lshl_b32 s%d, s%d, 3" % (sT1, sJ))
    I("s_add_u32 s%d, s%d, s%d" % (sT0, sT0, sT1))
    I("s_and_b32 s%d, s%d, 2" % (sT1, sWv))
    I("s_lshl_b32 s%d, s%d, 1" % (sT1, sT1))
    I("s_add_u32 s%d, s%d, s%d" % (sT0, sT0, sT1))
    I("s_lshl_b32 s%d, s%d, 14" % (sT0, sT0))
    I("s_add_u32 s%d, s%d, 0x%x" % (sT0, sT0, WS_KV))
    I("s_and_b32 s%d, s%d, 1" % (sT1, sWv))
    I("s_lshl_b32 s%d, s%d, 11" % (sT2, sT1))
    I("s_lshl_b32 s%d, s%d, 12" % (sT3, sT1))
    I("s_add_u32 s%d, s%d, 8192" % (sT3, sT3))
    I("s_cmp_lt_u32 s%d, 4" % sWv)
    I("s_cselect_b32 s%d, s%d, s%d" % (sT2, sT2, sT3))
    I("s_add_u32 s%d, s%d, s%d" % (sT0, sT0, sT2))
    I("v_lshlrev_b32 v%d, 4, v%d" % (vSt, vLane))
    I("v_add_u32 v%d, s%d, v%d" % (vSt, sT0, vSt))

    def mod_partial():
        vm.wait("mod")
        for i in range(3):
            c = vM + 12 + i
            I("v_lshlrev_b32 v%d, 16, v%d" % (c, c))
            I("v_mul_f32 v%d, 0x%x, v%d" % (vT, f32bits(-LOG2E), c))
            I("v_exp_f32 v%d, v%d" % (vT, vT))
            I("v_add_f32 v%d, 1.0, v%d" % (vT, vT))
            I("v_rcp_f32 v%d, v%d" % (vT, vT))
            I("v_mul_f32 v%d, v%d, v%d" % (c, c, vT))
            I("v_cvt_pk_bf16_f32 v%d, v%d, v%d" % (c, c, c))
            I("v_lshlrev_b32 v%d, 16, v%d" % (c, c))
            for d in range(4):
                w = vM + 4 * i + d
                I("v_lshlrev_b32 v%d, 16, v%d" % (vT, w))
                I("v_and_b32 v%d, 0xffff0000, v%d" % (vT + 1, w))
                op = "v_mul_f32" if i == 0 else "v_fmac_f32"
                I("%s v%d, v%d, v%d" % (op, vA + 2 * d, vT, c))
                I("%s v%d, v%d, v%d" % (op, vA + 2 * d + 1, vT + 1, c))
        for sh in (2, 4, 8):
            for e in range(8):
                I("v_add_f32_dpp v%d, v%d, v%d row_ror:%d row_mask:0xf bank_mask:0xf" % (vA + e, vA + e, vA + e, sh))
        I("v_lshrrev_b32 v%d, 4, v%d" % (vT, vTid))
        I("v_lshlrev_b32 v%d, 6, v%d" % (vT, vT))
        I("v_and_b32 v%d, 1, v%d" % (vT + 1, vTid))
        I("v_lshl_add_u32 v%d, v%d, 5, v%d" % (vT, vT + 1, vT))
        I("v_add_u32 v%d, %d, v%d" % (vT, LDS_RED, vT))
        I("v_and_b32 v%d, 14, v%d" % (vT + 1, vTid))
        I("v_cmp_eq_u32 vcc, 0, v%d" % (vT + 1))
        I("s_and_saveexec_b64 s[%d:%d], vcc" % (sEx, sEx + 1))
        I("ds_write_b128 v%d, %s" % (vT, vr(vA, 4)))
        I("ds_write_b128 v%d, %s offset:16" % (vT, vr(vA + 4, 4)))
        I("s_mov_b64 exec, s[%d:%d]" % (sEx, sEx + 1))

    def mod_final():
        L = k.newlabel("modskip")
        I("s_cmp_lg_u32 s%d, 0" % sWv)
        I("s_cbranch_scc1 %s" % L)
        I("v_and_b32 v%d, 15, v%d" % (vT, vLane))
        I("v_lshrrev_b32 v%d, 4, v%d" % (vT + 1, vLane))
        I("v_lshlrev_b32 v%d, 9, v%d" % (vT + 1, vT + 1))
        I("v_lshl_add_u32 v%d, v%d, 2, v%d" % (vT + 1, vT, vT + 1))
        I("v_add_u32 v%d, %d, v%d" % (vT + 1, LDS_RED, vT + 1))
        for e in range(8):
            I("ds_read_b32 v%d, v%d offset:%d" % (vA + e, vT + 1, 64 * e))
        I("s_waitcnt lgkmcnt(0)")
        for e in range(1, 8):
            I("v_add_f32 v%d, v%d, v%d" % (vA, vA, vA + e))
        I("v_mov_b32 v%d, v%d" % (vA + 1, vA))
        I("v_permlane16_swap_b32 v%d, v%d" % (vA, vA + 1))
        I("v_add_f32 v%d, v%d, v%d" % (vA, vA, vA + 1))
        I("v_mov_b32 v%d, v%d" % (vA + 1, vA))
        I("v_permlane32_swap_b32 v%d, v%d" % (vA, vA + 1))
        I("v_add_f32 v%d, v%d, v%d" % (vA, vA, vA + 1))
        I("v_cvt_pk_bf16_f32 v%d, v%d, v%d" % (vA, vA, vA))
        I("v_lshlrev_b32 v%d, 16, v%d" % (vA, vA))
        I("s_mul_i32 s%d, s%d, 1639" % (sSeg, sCG))
        I("s_lshr_b32 s%d, s%d, 16" % (sSeg, sSeg))
        I("s_cmp_eq_u32 s%d, 1" % sSeg)
        I("s_cselect_b32 s%d, 1.0, 0" % sT0)
        I("s_cmp_eq_u32 s%d, 4" % sSeg)
        I("s_cselect_b32 s%d, 1.0, s%d" % (sT0, sT0))
        I("v_add_f32 v%d, s%d, v%d" % (vA, sT0, vA))
        I("v_cvt_pk_bf16_f32 v%d, v%d, v%d" % (vA + 1, vA, vA))
        I("v_lshlrev_b32 v%d, 16, v%d" % (vA, vA + 1))
        I("s_lshl_b32 s%d, s%d, 6" % (sT0, sCG))
        I("s_add_u32 s%d, s%d, s%d" % (sT0, sT0, sBig))
        I("v_lshlrev_b32 v%d, 2, v%d" % (vT + 1, vLane))
        I("v_add_u32 v%d, s%d, v%d" % (vT + 1, sT0, vT + 1))
        I("s_mul_i32 s%d, s%d, 40" % (sT1, sSeg))
        I("s_sub_u32 s%d, s%d, s%d" % (sT1, sCG, sT1))
        I("s_lshr_b32 s%d, s%d, 1" % (sT2, sT1))
        I("s_lshl_b32 s%d, s%d, 10" % (sT2, sT2))
        I("s_and_b32 s%d, s%d, 1" % (sT1, sT1))
        I("s_lshl_b32 s%d, s%d, 3" % (sT1, sT1))
        I("s_add_u32 s%d, s%d, s%d" % (sT2, sT2, sT1))
        I("s_add_u32 s%d, s%d, 0x%x" % (sT2, sT2, WS_SPEC))
        I("s_add_u32 s%d, s%d, s%d" % (sT2, sT2, sBig))
        I("v_lshrrev_b32 v%d, 2, v%d" % (vA + 2, vLane))
        I("v_lshlrev_b32 v%d, 8, v%d" % (vA + 2, vA + 2))
        I("v_and_b32 v%d, 3, v%d" % (vA + 3, vLane))
        I("v_lshl_add_u32 v%d, v%d, 1, v%d" % (vA + 2, vA + 3, vA + 2))
        I("v_add_u32 v%d, s%d, v%d" % (vA + 2, sT2, vA + 2))
        I("s_mov_b32 s%d, 0x%x" % (sT1, BIG))
        I("s_cmp_eq_u32 s%d, 4" % sSeg)
        I("s_cselect_b32 s%d, 0, s%d" % (sT0, sT1))
        I("s_cmp_eq_u32 s%d, 3" % sSeg)
        I("s_cselect_b32 s%d, 16, s%d" % (sT0, sT0))
        I("s_cselect_b32 s%d, 32, s%d" % (sT1, sT1))
        I("v_mov_b32 v%d, 0x3f80" % (vA + 3))
        I("v_add_u32 v%d, s%d, v%d" % (vA + 4, sT0, vA + 2))
        I("v_add_u32 v%d, s%d, v%d" % (vA + 5, sT1, vA + 2))
        I("v_cmp_gt_u32 vcc, 16, v%d" % vLane)
        I("s_and_saveexec_b64 s[%d:%d], vcc" % (sEx, sEx + 1))
        I("buffer_store_dword v%d, v%d, s[%d:%d], 0 offen sc1" % (vA, vT + 1, sWS, sWS + 3))
        I("buffer_store_short v%d, v%d, s[%d:%d], 0 offen" % (vA + 1, vA + 4, sWS, sWS + 3))
        I("buffer_store_short v%d, v%d, s[%d:%d], 0 offen" % (vA + 3, vA + 5, sWS, sWS + 3))
        I("s_mov_b64 exec, s[%d:%d]" % (sEx, sEx + 1))
        k.label(L)

    def mod_signal():
        L = k.newlabel("sigskip")
        I("s_cmp_lg_u32 s%d, 0" % sWv)
        I("s_cbranch_scc1 %s" % L)
        I("s_add_u32 s%d, s%d, s%d" % (sT0, sCG, sBig))
        I("s_cmp_ge_u32 s%d, 80" % sT0)
        I("s_cbranch_scc1 %s" % L)
        I("v_mov_b32 v%d, 1" % vT)
        I("v_mov_b32 v%d, 0" % (vT + 1))
        I("s_mov_b64 exec, 1")
        I("buffer_atomic_add v%d, v%d, s[%d:%d], 0 offen sc1" % (vT, vT + 1, sDBG, sDBG + 3))
        I("s_mov_b64 exec, -1")
        k.label(L)

    def x_stats():
        vm.wait("x")
        t0, t1, acc = vT, vT + 1, vU
        for d in range(8):
            I("v_lshlrev_b32 v%d, 16, v%d" % (t0, vX + d))
            I("v_and_b32 v%d, 0xffff0000, v%d" % (t1, vX + d))
            if d == 0:
                I("v_add_f32 v%d, v%d, v%d" % (acc, t0, t1))
            else:
                I("v_add_f32 v%d, v%d, v%d" % (acc, acc, t0))
                I("v_add_f32 v%d, v%d, v%d" % (acc, acc, t1))
        I("v_mul_f32 v%d, 0x%x, v%d" % (acc, f32bits(1.0 / 640), acc))
        wave_sum_to_sgpr(k, acc, sMean)
        acc2 = vU + 1
        for d in range(8):
            a = acc if d < 4 else acc2
            I("v_lshlrev_b32 v%d, 16, v%d" % (t0, vX + d))
            I("v_and_b32 v%d, 0xffff0000, v%d" % (t1, vX + d))
            I("v_subrev_f32 v%d, s%d, v%d" % (t0, sMean, t0))
            I("v_subrev_f32 v%d, s%d, v%d" % (t1, sMean, t1))
            if d % 4 == 0:
                I("v_mul_f32 v%d, v%d, v%d" % (a, t0, t0))
            else:
                I("v_fmac_f32 v%d, v%d, v%d" % (a, t0, t0))
            I("v_fmac_f32 v%d, v%d, v%d" % (a, t1, t1))
        I("v_cmp_gt_u32 vcc, 16, v%d" % vLane)
        I("v_cndmask_b32 v%d, 0, v%d, vcc" % (acc2, acc2))
        I("v_add_f32 v%d, v%d, v%d" % (acc, acc, acc2))
        I("v_mul_f32 v%d, 0x%x, v%d" % (acc, f32bits(1.0 / 640), acc))
        wave_sum_to_sgpr(k, acc, sRstd)
        I("v_mov_b32 v%d, s%d" % (acc, sRstd))
        I("v_add_f32 v%d, 0x%x, v%d" % (acc, f32bits(1e-5), acc))
        I("v_rsq_f32 v%d, v%d" % (acc, acc))
        I("v_mul_f32 v%d, 0x%x, v%d" % (acc, f32bits(QSCALE), acc))
        I("v_readfirstlane_b32 s%d, v%d" % (sRstd, acc))

    def poll_issue():
        I("v_mov_b32 v%d, 0" % vT)
        I("buffer_load_dword v%d, v%d, s[%d:%d], 0 offen sc1" % (vPoll, vT, sDBG, sDBG + 3)); vm.issue("poll")

    def poll_check():
        vm.wait("poll")
        Lok, Lsp = k.newlabel("pok"), k.newlabel("spin")
        k.label(Lsp)
        I("v_readfirstlane_b32 s%d, v%d" % (sT0, vPoll))
        I("s_cmp_ge_u32 s%d, 80" % sT0)
        I("s_cbranch_scc1 %s" % Lok)
        I("s_sleep 8")
        I("v_mov_b32 v%d, 0" % vT)
        I("buffer_load_dword v%d, v%d, s[%d:%d], 0 offen sc1" % (vPoll, vT, sDBG, sDBG + 3))
        I("s_waitcnt vmcnt(0)")
        I("s_branch %s" % Lsp)
        k.label(Lok)
        I("v_lshlrev_b32 v%d, 5, v%d" % (vT, vLane))
        I("v_lshlrev_b32 v%d, 1, v%d" % (vT + 1, vXo1))
        for (dst, base) in ((vSA, 0), (vG, 2560)):
            for c, va in ((0, vT), (1, vT + 1)):
                for hh in range(2):
                    I("buffer_load_dwordx4 %s, v%d, s[%d:%d], 0 offen offset:%d sc1" % (vr(dst + 8 * c + 4 * hh, 4), va, sWS, sWS + 3, base + 16 * hh)); vm.issue("sag")

    def h_compute():
        vm.wait("sag")
        t0, t1 = vT, vT + 1
        I("s_mov_b32 s%d, 0x%x" % (sT0, f32bits(QSCALE)))
        for d in range(8):
            I("v_lshlrev_b32 v%d, 16, v%d" % (t0, vX + d))
            I("v_and_b32 v%d, 0xffff0000, v%d" % (t1, vX + d))
            I("v_subrev_f32 v%d, s%d, v%d" % (t0, sMean, t0))
            I("v_subrev_f32 v%d, s%d, v%d" % (t1, sMean, t1))
            I("v_mul_f32 v%d, s%d, v%d" % (t0, sRstd, t0))
            I("v_mul_f32 v%d, s%d, v%d" % (t1, sRstd, t1))
            I("v_mul_f32 v%d, s%d, v%d" % (vSA + 2 * d, sT0, vSA + 2 * d))
            I("v_mul_f32 v%d, s%d, v%d" % (vSA + 2 * d + 1, sT0, vSA + 2 * d + 1))
            I("v_fma_f32 v%d, v%d, v%d, v%d" % (t0, t0, vG + 2 * d, vSA + 2 * d))
            I("v_fma_f32 v%d, v%d, v%d, v%d" % (t1, t1, vG + 2 * d + 1, vSA + 2 * d + 1))
            I("v_cvt_pk_bf16_f32 v%d, v%d, v%d" % (vX + d, t0, t1))
        I("buffer_store_dwordx4 %s, v%d, s[%d:%d], 0 offen" % (vr(vX, 4), vHo0, sWS, sWS + 3)); vm.issue("hst")
        I("buffer_store_dwordx4 %s, v%d, s[%d:%d], 0 offen" % (vr(vX + 4, 4), vHo1, sWS, sWS + 3)); vm.issue("hst")

    def rdC(kt, kvb):
        stg = (kt % 4) * 32768; hi = 1 if stg >= 65536 else 0; so = stg - 65536 * hi
        return "ds_read_b128 %s, v%d offset:%d" % (vr(vCf + 4 * kvb, 4), vCa + hi, so + kvb * 1024)
    def rdW(kt, db, hf):
        stg = (kt % 4) * 32768; hi = 1 if stg >= 65536 else 0; so = stg - 65536 * hi
        return "ds_read_b64_tr_b16 %s, v%d offset:%d" % (vr(vWf + 16 * (kt & 1) + 4 * db + 2 * hf, 2), vWa + 2 * db + hi, so + 1024 * hf)
    def mfma(kt, kvb, db, isK):
        acc = vr(vAcc + 16 * kvb + 4 * db, 4)
        cf = vr(vCf + 4 * kvb, 4); wf = vr(vWf + 16 * (kt & 1) + 4 * db, 4)
        a, b = (wf, cf) if isK else (cf, wf)
        return "v_mfma_f32_16x16x32_bf16 %s, %s, %s, %s" % (acc, a, b, "0" if kt == 0 else acc)

    def mainloop(isK):
        saved = list(vm.q); sn = st.n
        vm.wait("kt0")
        I("s_barrier")
        st.stamp()
        for db in range(4):
            for hf in range(2): I(rdW(0, db, hf))
        for kvb in range(8): I(rdC(0, kvb))
        for kt in range(16):
            nxt = kt + 1 < 16
            I("s_waitcnt lgkmcnt(7)")
            for db in range(4): I(mfma(kt, 0, db, isK))
            I("s_waitcnt lgkmcnt(0)")
            for db in range(2): I(mfma(kt, 1, db, isK))
            if nxt:
                vm.wait("kt%d" % (kt + 1))
                I("s_barrier")
                if kt in (0, 7, 14): st.stamp()
            for db in range(2, 4): I(mfma(kt, 1, db, isK))
            if kt + 4 < 16: dma(kt + 4)
            if kt == 2: mod_partial()
            if kt == 3 and isK: mod_final()
            if kt == 7 and isK: mod_signal()
            if kt == 4: x_stats()
            if kt == 12: poll_issue()
            if kt == 15: poll_check()
            rd = []
            if nxt:
                rd = [rdW(kt + 1, db, hf) for db in range(4) for hf in range(2)]
                rd += [rdC(kt + 1, 0), rdC(kt + 1, 1)]
            ri = 0
            for kvb in range(2, 8):
                for db in range(4):
                    I(mfma(kt, kvb, db, isK))
                    if ri < len(rd): I(rd[ri]); ri += 1
                if nxt: rd.append(rdC(kt + 1, kvb))
            while ri < len(rd): I(rd[ri]); ri += 1
        st.stamp()
        n = 0
        for blk in range(4):
            for a in range(2):
                for b in range(2 if isK else 4) if False else range(2):
                    pass
        if isK:
            for kvb in range(8):
                for dp in range(2):
                    dst = vCf + 4 * (n % 8); n += 1
                    a = vAcc + 16 * kvb + 8 * dp
                    for q in range(4):
                        I("v_cvt_pk_bf16_f32 v%d, v%d, v%d" % (dst + q, a + 2 * q, a + 2 * q + 1))
                    I("s_mov_b32 s%d, %d" % (sT0, (kvb >> 1) * 16384 + (kvb & 1) * 4096 + dp * 1024))
                    I("buffer_store_dwordx4 %s, v%d, s[%d:%d], s%d offen" % (vr(dst, 4), vSt, sWS, sWS + 3, sT0)); vm.issue("st")
        else:
            for p in range(4):
                for db in range(4):
                    dst = vCf + 4 * (n % 8); n += 1
                    for hh in range(2):
                        a = vAcc + 16 * (2 * p + hh) + 4 * db
                        for q in range(2):
                            I("v_cvt_pk_bf16_f32 v%d, v%d, v%d" % (dst + 2 * hh + q, a + 2 * q, a + 2 * q + 1))
                    I("s_mov_b32 s%d, %d" % (sT0, p * 16384 + db * 1024))
                    I("buffer_store_dwordx4 %s, v%d, s[%d:%d], s%d offen" % (vr(dst, 4), vSt, sWS, sWS + 3, sT0)); vm.issue("st")
        st.stamp()
        h_compute()
        st.dump(sWS, sWv, vT, sT0, 8)
        I("s_endpgm")
        vm.q = saved; st.n = sn

    LV = "k1_vpath"
    I("s_cmp_ge_u32 s%d, 4" % sWv)
    I("s_cbranch_scc1 %s" % LV)
    mainloop(True)
    k.label(LV)
    mainloop(False)
    k.label(L_end)
    I("s_endpgm")
    return k
```

```python
from fw import *
from layout import *
from k1 import srd, BIG

THR = 4096.0

def gen_k2():
    LDS_ST = 131072
    k = Kern("k2_kernel", 256, 512, 131072 + 4096)
    I = k.I
    vm = Cnt(k, "vmcnt", 63)
    sWQ, sWS = 8, 12
    sH, sA, sWv, sHf, sQs = 16, 17, 18, 19, 20
    sT0, sT1, sT2, sT3 = 21, 22, 23, 24
    sKVb, sPos, sTB, sM0b, sSlotW, sSlotR = 25, 26, 27, 28, 29, 30
    sN, sQb, sThr, sPass, sSo = 31, 32, 33, 34, 35
    sHb = 36
    sPtr = 40
    sM = 48
    vO, vS, vP, vNM, vQC, vQN, vF, vT = 0, (64, 80), (96, 104), 112, 120, 152, 184, 216
    vSum, vL, vThr, vNeg, vL16, vRd, vCtx, vThr0 = 224, 226, 228, 229, 230, 231, 232, 233
    vWa = 234
    vDW = 242
    vX0, vX1, vX2, vX3 = 243, 244, 245, 246
    vRd0 = 247
    vMg = 248
    vH = 64
    HD = 15
    L_end = "k2_end"
    fixups = []
    I("s_cmp_ge_u32 s2, 256")
    I("s_cbranch_scc1 %s" % L_end)
    st = Stamps(k, 60, 20)
    st.stamp(True); st.stamp()
    I("s_load_dwordx2 s[%d:%d], s[0:1], %d" % (sPtr, sPtr + 1, KA_WQ))
    I("s_load_dwordx2 s[%d:%d], s[0:1], %d" % (sPtr + 2, sPtr + 3, KA_WS))
    I("v_lshrrev_b32 v%d, 6, v0" % vX0)
    I("v_and_b32 v%d, 63, v0" % vX1)
    I("v_readfirstlane_b32 s%d, v%d" % (sWv, vX0))
    I("v_lshlrev_b32 v%d, 4, v%d" % (vL16, vX1))
    I("s_and_b32 s%d, s2, 7" % sT0)
    I("s_lshr_b32 s%d, s2, 3" % sT1)
    I("s_and_b32 s%d, s%d, 3" % (sH, sT1))
    I("s_lshl_b32 s%d, s%d, 2" % (sT2, sT0))
    I("s_add_u32 s%d, s%d, s%d" % (sH, sH, sT2))
    I("s_lshr_b32 s%d, s2, 5" % sA)
    I("s_lshr_b32 s%d, s%d, 2" % (sHf, sWv))
    I("s_and_b32 s%d, s%d, 3" % (sQs, sWv))
    I("v_lshrrev_b32 v%d, 4, v%d" % (vX0, vX1))
    I("v_lshlrev_b32 v%d, 1, v%d" % (vX2, vX0))
    I("v_xor_b32 v%d, v%d, v%d" % (vX2, vX2, vX1))
    I("v_and_b32 v%d, 15, v%d" % (vX2, vX2))
    I("v_lshlrev_b32 v%d, 4, v%d" % (vX2, vX2))
    I("v_lshl_add_u32 v%d, v%d, 13, v%d" % (vX2, vX0, vX2))
    I("s_lshl_b32 s%d, s%d, 17" % (sT0, sWv))
    I("s_lshl_b32 s%d, s%d, 8" % (sT1, sH))
    I("s_add_u32 s%d, s%d, s%d" % (sT0, sT0, sT1))
    I("v_add_u32 v%d, s%d, v%d" % (vDW, sT0, vX2))
    vDW2 = vThr0
    I("v_xor_b32 v%d, 128, v%d" % (vDW2, vDW))
    I("s_lshl_b32 s%d, s%d, 12" % (sM0b, sWv))
    I("s_sub_u32 s%d, 15, s%d" % (sQb, sA))
    I("s_cmp_eq_u32 s%d, 0" % sHf)
    I("s_cselect_b32 s%d, s%d, s%d" % (sT0, sQb, sA))
    I("s_lshl_b32 s%d, s%d, 2" % (sT0, sT0))
    I("s_add_u32 s%d, s%d, s%d" % (sT0, sT0, sQs))
    I("s_mul_i32 s%d, s%d, 40960" % (sHb, sT0))
    I("s_add_u32 s%d, s%d, 0x%x" % (sHb, sHb, WS_HF))
    I("v_add_u32 v%d, s%d, v%d" % (vX3, sHb, vL16))
    I("v_add_u32 v%d, 20480, v%d" % (vCtx, vX3))
    I("s_waitcnt lgkmcnt(0)")
    srd(k, sWQ, sPtr, sPtr + 1, 640 * 4096 * 2)
    srd(k, sWS, sPtr + 2, sPtr + 3, WS_SIZE)

    def dmaW(u):
        I("s_add_u32 m0, s%d, %d" % (sM0b, (u % 4) * 32768))
        for i in range(4):
            I("s_mov_b32 s%d, %d" % (sSo, u * 128 * 8192 + i * (32768 - 1024)))
            I("buffer_load_dwordx4 v%d, s[%d:%d], s%d offen offset:%d lds" % (vDW if i < 2 else vDW2, sWQ, sWQ + 3, sSo, 1024 * i)); vm.issue("u%d" % u)
    def ldh(ks):
        b = vH + 8 * (ks % HD)
        o = ks * 1024
        I("s_mov_b32 s%d, %d" % (sSo, o))
        I("buffer_load_dwordx4 %s, v%d, s[%d:%d], s%d offen" % (vr(b, 4), vX3, sWS, sWS + 3, sSo)); vm.issue("h%d" % ks)
        I("buffer_load_dwordx4 %s, v%d, s[%d:%d], s%d offen" % (vr(b + 4, 4), vCtx, sWS, sWS + 3, sSo)); vm.issue("h%d" % ks)
    dmaW(0)
    for ks in range(4): ldh(ks)
    dmaW(1)
    for ks in range(4, 8): ldh(ks)
    st.stamp()
    I("s_lshl_b32 s%d, s%d, 20" % (sKVb, sH))
    I("s_add_u32 s%d, s%d, 0x%x" % (sKVb, sKVb, WS_KV))
    I("s_and_b32 s%d, s%d, 2" % (sT0, sWv))
    I("s_lshl_b32 s%d, s%d, 13" % (sT0, sT0))
    I("s_add_u32 s%d, s%d, s%d" % (sKVb, sKVb, sT0))
    I("s_and_b32 s%d, s%d, 1" % (sT0, sWv))
    I("s_lshl_b32 s%d, s%d, 12" % (sT0, sT0))
    I("s_add_u32 s%d, s%d, s%d" % (sKVb, sKVb, sT0))
    I("s_lshl_b32 s%d, s%d, 1" % (sTB, sQb))
    I("s_add_u32 s%d, s%d, 2" % (sTB, sTB))
    I("v_lshrrev_b32 v%d, 2, v%d" % (vX0, vX1))
    I("v_and_b32 v%d, 3, v%d" % (vX0, vX0))
    I("v_lshrrev_b32 v%d, 4, v%d" % (vX2, vX1))
    I("v_and_b32 v%d, 1, v%d" % (vWa, vX2))
    I("v_lshl_add_u32 v%d, v%d, 2, v%d" % (vWa, vWa, vX0))
    I("v_lshlrev_b32 v%d, 5, v%d" % (vWa, vWa))
    I("v_lshl_add_u32 v%d, v%d, 8, v%d" % (vWa, vX0, vWa))
    I("v_lshl_add_u32 v%d, v%d, 11, v%d" % (vWa, vX2, vWa))
    I("v_and_b32 v%d, 3, v%d" % (vX0, vX1))
    I("v_lshl_add_u32 v%d, v%d, 3, v%d" % (vWa, vX0, vWa))
    for db in range(1, 8):
        I("v_xor_b32 v%d, %d, v%d" % (vWa + db, 32 * db, vWa))
    I("s_lshl_b32 s%d, s%d, 13" % (sT0, sHf))
    I("v_add_u32 v%d, s%d, v%d" % (vRd0, sT0, vL16))
    I("v_mov_b32 v%d, 0x%x" % (vNeg, f32bits(-1e30)))
    I("s_mov_b32 s%d, 0x%x" % (sThr, f32bits(THR)))

    def dma_pre():
        I("s_lshl_b32 s%d, s%d, 15" % (sSo, sHf))
        I("s_add_u32 s%d, s%d, s%d" % (sSo, sSo, sKVb))
        I("s_add_u32 m0, s%d, %d" % (sM0b, 32768))
        for i in range(4):
            I("buffer_load_dwordx4 v%d, s[%d:%d], s%d offen offset:%d lds" % (vL16, sWS, sWS + 3, sSo, 1024 * i)); vm.issue("u5")
        I("s_lshl_b32 s%d, s%d, 1" % (sPos, sHf))
        I("s_xor_b32 s%d, s%d, 1" % (sT0, sHf))
        I("s_lshl_b32 s%d, s%d, 13" % (sT0, sT0))
        I("s_add_u32 s%d, s%d, s%d" % (sKVb, sKVb, sT0))
        I("s_add_u32 s%d, s%d, %d" % (sSlotW, sM0b, 65536))
    def dma_kv_list(tag=None):
        o = []
        o.append("s_sub_u32 s%d, s%d, s%d" % (sT0, sPos, sTB))
        o.append("s_cmp_lt_u32 s%d, s%d" % (sPos, sTB))
        o.append("s_cselect_b32 s%d, s%d, s%d" % (sT0, sPos, sT0))
        o.append("s_lshl_b32 s%d, s%d, 15" % (sT0, sT0))
        o.append("s_add_u32 s%d, s%d, s%d" % (sSo, sT0, sKVb))
        o.append("s_mov_b32 m0, s%d" % sSlotW)
        o.append("s_add_u32 s%d, s%d, 1" % (sPos, sPos))
        for i in range(4):
            o.append("buffer_load_dwordx4 v%d, s[%d:%d], s%d offen offset:%d lds" % (vL16, sWS, sWS + 3, sSo, 1024 * i))
        o.append("s_add_u32 s%d, s%d, 32768" % (sSlotW, sSlotW))
        o.append("s_and_b32 s%d, s%d, 0x1ffff" % (sSlotW, sSlotW))
        return o
    def dma_kv(tag):
        for x in dma_kv_list():
            I(x)
            if x.startswith("buffer"): vm.issue(tag)

    def rdW(ks, db, hf):
        u = ks // 4; off = (u % 4) * 32768 + (ks % 4) * 8192 + 1024 * hf
        return "ds_read_b64_tr_b16 %s, v%d offset:%d" % (vr(vF + 4 * db + 2 * hf, 2), vWa + db, off % 65536)
    def shiftW(delta):
        for db in range(8):
            I("v_add_u32 v%d, %d, v%d" % (vWa + db, delta & 0xffffffff, vWa + db))
    vm.wait("u0")
    I("s_barrier")
    st.stamp()
    dmaW(2)
    for db in range(8):
        I(rdW(0, db, 0)); I(rdW(0, db, 1))
    for ks in range(8, 12): ldh(ks)
    dmaW(3)
    for ks in range(12, 14): ldh(ks)
    nexth = 14
    for ks in range(20):
        u = ks // 4
        newu = (ks + 1) % 4 == 0 and ks + 1 < 20
        vm.wait("h%d" % ks)
        hb = vH + 8 * (ks % HD)
        def mf(db, qs):
            acc = vr(vO + 8 * db + 4 * qs, 4)
            return "v_mfma_f32_16x16x32_bf16 %s, %s, %s, %s" % (acc, vr(vF + 4 * db, 4), vr(hb + 4 * qs, 4), "0" if ks == 0 else acc)
        pend = []
        for db in range(8):
            if newu:
                if db == 0: I("s_waitcnt lgkmcnt(12)")
                if db == 2: I("s_waitcnt lgkmcnt(0)")
            elif ks == 19:
                if db % 2 == 0: I("s_waitcnt lgkmcnt(%d)" % (12 - 2 * db))
            else:
                if db % 2 == 0: I("s_waitcnt lgkmcnt(12)")
            I(mf(db, 0)); I(mf(db, 1))
            if ks + 1 < 20:
                pend += [rdW(ks + 1, db, 0), rdW(ks + 1, db, 1)]
            if newu and db == 2:
                vm.wait("u%d" % (u + 1))
                I("s_barrier")
                if (u + 1) in (2, 4): shiftW(65536 if u + 1 == 2 else -65536)
                if u == 0: dmaW(4)
                if u == 1: dma_pre()
                if u == 2: dma_kv("u6")
            if not (newu and db < 2):
                n = 4 if newu else 2
                for x in pend[:n]: I(x)
                pend = pend[n:]
            if db == 5 and nexth < 20:
                ldh(nexth); nexth += 1
        for x in pend: I(x)
    st.stamp()
    for qs in range(2):
        for ks in range(4):
            for hh in range(2):
                a = vO + 8 * (2 * ks + hh) + 4 * qs
                for q in range(2):
                    I("v_cvt_pk_bf16_f32 v%d, v%d, v%d" % (vQC + 16 * qs + 4 * ks + 2 * hh + q, a + 2 * q, a + 2 * q + 1))
    I("s_lshl_b32 s%d, s%d, 13" % (sT0, sQs))
    I("v_add_u32 v%d, s%d, v%d" % (vX0, sT0, vL16))
    I("v_add_u32 v%d, 98304, v%d" % (vX1, vX0))
    I("s_cmp_eq_u32 s%d, 0" % sHf)
    I("s_cselect_b32 s%d, 98304, 0" % sT1)
    I("v_add_u32 v%d, s%d, v%d" % (vX2, sT1, vX0))
    I("s_barrier")
    for i in range(8):
        I("ds_write_b128 v%d, %s offset:%d" % (vX2, vr(vQC + 4 * i, 4), 1024 * i))
    vm.wait("u5")
    I("s_waitcnt lgkmcnt(0)")
    I("s_barrier")
    for i in range(8):
        I("ds_read_b128 %s, v%d offset:%d" % (vr(vQC + 4 * i, 4), vX1, 1024 * i))
    for i in range(8):
        I("ds_read_b128 %s, v%d offset:%d" % (vr(vF + 4 * i, 4), vRd0, 32768 + 1024 * i))
    I("s_waitcnt lgkmcnt(0)")
    for i in range(8):
        I("ds_read_b128 %s, v%d offset:%d" % (vr(vQN + 4 * i, 4), vX0, 1024 * i))

    def qk_list(S, Q, czero):
        o = []
        for kvs in range(2):
            for ks in range(4):
                for qs in range(2):
                    d = vr(S + 8 * qs + 4 * kvs, 4)
                    c = d if ks else ("0" if czero else vr(vNM + 4 * qs, 4))
                    o.append("v_mfma_f32_16x16x32_bf16 %s, %s, %s, %s" % (d, vr(vF + 4 * (4 * kvs + ks), 4), vr(Q + 16 * qs + 4 * ks, 4), c))
        return o
    def pv_list(P):
        o = []
        for db in range(8):
            for qs in range(2):
                d = vr(vO + 8 * db + 4 * qs, 4)
                o.append("v_mfma_f32_16x16x32_bf16 %s, %s, %s, %s" % (d, vr(vF + 4 * db, 4), vr(P + 4 * qs, 4), d))
        return o
    def sm_list(S, P, kvs):
        o = []
        for qs in range(2):
            for j in range(2):
                s = S + 8 * qs + 4 * kvs + 2 * j
                t0 = vT + 4 * qs + 2 * j; t1 = t0 + 1
                o.append("v_exp_f32 v%d, v%d" % (t0, s))
                o.append("v_exp_f32 v%d, v%d" % (t1, s + 1))
                if kvs == 0 and j == 0:
                    o.append("v_cvt_pk_bf16_f32 v%d, v%d, v%d" % (P + 4 * qs + 2 * kvs + j, t0, t1))
                    o.append("v_add_f32 v%d, v%d, v%d" % (vSum + qs, t0, t1))
                else:
                    o.append("v_add_f32 v%d, v%d, v%d" % (vSum + qs, vSum + qs, t0))
                    o.append("v_cvt_pk_bf16_f32 v%d, v%d, v%d" % (P + 4 * qs + 2 * kvs + j, t0, t1))
                    o.append("v_add_f32 v%d, v%d, v%d" % (vSum + qs, vSum + qs, t1))
        return o
    def skew(o):
        exps = [x for x in o if x.startswith("v_exp")]
        rest = [x for x in o if not x.startswith("v_exp")]
        out = exps[:2]; e = 2; r = 0
        groups = len(exps) // 2
        per = []
        cur = []
        for x in o:
            if x.startswith("v_exp"):
                if cur: per.append(cur); cur = []
            else: cur.append(x)
        per.append(cur)
        for g in range(groups):
            nx = exps[e:e + 2]; e += 2
            seq = []
            rr = list(per[g])
            if nx: seq.append(nx[0])
            seq.append(rr.pop(0))
            if nx: seq.append(nx[1])
            seq += rr
            out += seq
        return out
    def mask_list(S, kvs):
        o = []
        items = [(qs, r) for qs in range(2) for r in range(4)]
        for grp in range(2):
            for i in range(4):
                qs, r = items[4 * grp + i]
                o.append("v_cmp_le_i32 s[%d:%d], %d, v%d" % (sM + 2 * i, sM + 2 * i + 1, 16 * kvs + r - 16 * qs, vThr))
            for i in range(4):
                qs, r = items[4 * grp + i]
                s = S + 8 * qs + 4 * kvs + r
                o.append("v_cndmask_b32 v%d, v%d, v%d, s[%d:%d]" % (s, vNeg, s, sM + 2 * i, sM + 2 * i + 1))
        return o
    def rowmax(S, qs, dst, tmp):
        s = S + 8 * qs
        I("v_max3_f32 v%d, v%d, v%d, v%d" % (dst, s, s + 1, s + 2))
        I("v_max3_f32 v%d, v%d, v%d, v%d" % (dst, dst, s + 3, s + 4))
        I("v_max3_f32 v%d, v%d, v%d, v%d" % (dst, dst, s + 5, s + 6))
        I("v_max_f32 v%d, v%d, v%d" % (dst, dst, s + 7))
        for sw in ("v_permlane16_swap_b32", "v_permlane32_swap_b32"):
            I("v_mov_b32 v%d, v%d" % (tmp, dst))
            I("%s v%d, v%d" % (sw, dst, tmp))
            I("v_max_f32 v%d, v%d, v%d" % (dst, dst, tmp))
    def emit_fixup(lab, ret, par, adjust_next):
        S, Sn, P = vS[par], vS[1 - par], vP[par]
        k.label(lab)
        I("s_nop 15")
        for qs in range(2):
            d, f = vX0, vX1
            rowmax(S, qs, d, vX2)
            I("v_max_f32 v%d, 0, v%d" % (d, d))
            I("v_sub_f32 v%d, 0, v%d" % (f, d))
            I("v_exp_f32 v%d, v%d" % (f, f))
            for i in range(8):
                I("v_sub_f32 v%d, v%d, v%d" % (S + 8 * qs + i, S + 8 * qs + i, d))
                if adjust_next: I("v_sub_f32 v%d, v%d, v%d" % (Sn + 8 * qs + i, Sn + 8 * qs + i, d))
            for i in range(4):
                I("v_sub_f32 v%d, v%d, v%d" % (vNM + 4 * qs + i, vNM + 4 * qs + i, d))
            for db in range(8):
                for i in range(4):
                    o = vO + 8 * db + 4 * qs + i
                    I("v_mul_f32 v%d, v%d, v%d" % (o, o, f))
            I("v_mul_f32 v%d, v%d, v%d" % (vL + qs, vL + qs, f))
        for kvs in range(2):
            for x in sm_list(S, P, kvs): I(x)
        I("s_nop 3")
        I("s_branch %s" % ret)

    def spread(mf, fill, start=0, end=None):
        n = len(mf); end = n if end is None else end
        gaps = [[] for _ in range(n)]
        m = end - start
        for j, x in enumerate(fill):
            gaps[start + (j * m) // len(fill)].append(x)
        return gaps

    def interval(par, masked, last):
        S, Sn, P, Pn = vS[par], vS[1 - par], vP[par], vP[1 - par]
        mf = qk_list(Sn, vQN if last else vQC, last)
        g_sm = spread(mf, skew(sm_list(S, P, 1)), 0, 14)
        rdV = ["ds_read_b128 %s, v%d offset:%d" % (vr(vF + 4 * i, 4), vRd, 1024 * i) for i in range(8)]
        dm = [] if last else dma_kv_list()
        X = os.environ.get("X", "")
        if "d" in X: dm = [x for x in dm if not x.startswith("buffer")]
        if "s" in X: dm = []
        if "e" in X: g_sm = [[x for x in g if "v_add" not in x] for g in g_sm]
        if "z" in X: g_sm = [[] for g in g_sm]
        ri = 0
        for g in range(16):
            if g == 0 and "w" not in X: I("s_waitcnt lgkmcnt(6)")
            if g == 4:
                if "w" not in X: I("s_waitcnt vmcnt(8) lgkmcnt(0)" if "v" not in X else "s_waitcnt lgkmcnt(0)")
                if "b" not in X: I("s_barrier")
                I("v_add_u32 v%d, s%d, v%d" % (vRd, sSlotR, vRd0))
                I("s_add_u32 s%d, s%d, 32768" % (sSlotR, sSlotR))
                I("s_and_b32 s%d, s%d, 0x1ffff" % (sSlotR, sSlotR))
            I(mf[g])
            if g >= 4:
                lim = (g + 1) // 2
                cnt = 0
                while ri < lim and cnt < 1 + (g < 8):
                    if "r" not in X: I(rdV[ri])
                    ri += 1; cnt += 1
            for x in g_sm[g]: I(x)
            if g >= 8 and dm:
                for x in dm[:2]: I(x)
                dm = dm[2:]
        assert ri == 8 and not dm
        if "c" not in X:
            I("v_max_f32 v%d, v%d, v%d" % (vX3, vSum, vSum + 1))
            I("v_cmp_lt_f32 vcc, s%d, v%d" % (sThr, vX3))
            lf, lr = k.newlabel("fix"), k.newlabel("ret")
            I("s_cbranch_vccnz %s" % lf)
            k.label(lr)
            fixups.append((lf, lr, par, not last))
        I("v_add_f32 v%d, v%d, v%d" % (vL, vL, vSum))
        I("v_add_f32 v%d, v%d, v%d" % (vL + 1, vL + 1, vSum + 1))
        mf = pv_list(P)
        fill = []
        if not last:
            if masked:
                fill += ["v_subrev_u32 v%d, 64, v%d" % (vThr, vThr)]
                fill += mask_list(Sn, 0)
            fill += skew(sm_list(Sn, Pn, 0))
            if masked: fill += mask_list(Sn, 1)
        g_sm = spread(mf, fill, 0, 16) if fill else [[] for _ in range(16)]
        if "e" in X: g_sm = [[x for x in g if "v_add" not in x] for g in g_sm]
        if "z" in X: g_sm = [[] for g in g_sm]
        rdK = ["ds_read_b128 %s, v%d offset:%d" % (vr(vF + 4 * i, 4), vRd, 16384 + 1024 * i) for i in range(8)]
        for g in range(16):
            if g % 4 == 0 and "w" not in X: I("s_waitcnt lgkmcnt(6)")
            I(mf[g])
            if g % 2 == 1 and "r" not in X: I(rdK[g // 2])
            for x in g_sm[g]: I(x)

    mf = qk_list(vS[0], vQC, True)
    for g in range(16):
        I(mf[g])
        if g % 2 == 1: I("ds_read_b128 %s, v%d offset:%d" % (vr(vF + 4 * (g // 2), 4), vRd0, 32768 + 16384 + 1024 * (g // 2)))
    I("s_waitcnt lgkmcnt(0)")
    I("s_barrier")
    dma_kv("u7"); dma_kv("u8")
    I("s_mov_b32 s%d, 65536" % sSlotR)
    I("s_mov_b32 s%d, 0" % sPass)
    I("v_lshrrev_b32 v%d, 4, v%d" % (vX0, vL16))
    I("v_and_b32 v%d, 15, v%d" % (vX1, vX0))
    I("v_lshrrev_b32 v%d, 4, v%d" % (vX0, vX0))
    I("v_lshlrev_b32 v%d, 2, v%d" % (vX0, vX0))
    I("v_sub_u32 v%d, v%d, v%d" % (vThr0, vX1, vX0))
    I("s_sub_u32 s%d, s%d, s%d" % (sT0, sQs, sHf))
    I("s_lshl_b32 s%d, s%d, 5" % (sT0, sT0))
    I("v_add_u32 v%d, s%d, v%d" % (vThr0, sT0, vThr0))
    I("v_lshlrev_b32 v%d, 4, v%d" % (vX1, vX1))
    I("s_lshl_b32 s%d, s%d, 8" % (sT0, sWv))
    I("s_add_u32 s%d, s%d, %d" % (sT0, sT0, LDS_ST))
    I("v_add_u32 v%d, s%d, v%d" % (vMg + 2, sT0, vX1))
    I("v_xor_b32 v%d, 1024, v%d" % (vMg + 3, vMg + 2))
    st.stamp()

    k.label("k2_init")
    I("s_mov_b32 s%d, s%d" % (sN, sQb))
    I("s_cmp_eq_u32 s%d, 0" % sQb)
    I("s_cselect_b32 s%d, 0, 4096" % sT0)
    I("v_add_u32 v%d, s%d, v%d" % (vThr, sT0, vThr0))
    for i in range(64): I("v_mov_b32 v%d, 0" % (vO + i))
    for kvs in range(2):
        for x in mask_list(vS[0], kvs): I(x)
    I("s_cselect_b32 s%d, 0, 64" % sT0)
    I("v_add_u32 v%d, s%d, v%d" % (vThr, sT0, vThr0))
    for qs in range(2):
        rowmax(vS[0], qs, vX0, vX2)
        I("v_max_f32 v%d, 0x%x, v%d" % (vX0, f32bits(-1e20), vX0))
        for i in range(8):
            I("v_sub_f32 v%d, v%d, v%d" % (vS[0] + 8 * qs + i, vS[0] + 8 * qs + i, vX0))
        for i in range(4):
            I("v_sub_f32 v%d, 0, v%d" % (vNM + 4 * qs + i, vX0))
        I("v_mov_b32 v%d, 0" % (vL + qs))
    for x in skew(sm_list(vS[0], vP[0], 0)): I(x)
    I("s_lshl_b32 s%d, s%d, 2" % (sT0, sQb))
    I("s_add_u32 s%d, s%d, s%d" % (sT0, sT0, sQs))
    I("s_lshl_b32 s%d, s%d, 18" % (sT0, sT0))
    I("s_lshl_b32 s%d, s%d, 12" % (sT1, sH))
    I("s_add_u32 s%d, s%d, s%d" % (sT0, sT0, sT1))
    I("s_lshl_b32 s%d, s%d, 11" % (sT1, sHf))
    I("s_add_u32 s%d, s%d, s%d" % (sT0, sT0, sT1))
    I("s_add_u32 s%d, s%d, 0x%x" % (sT0, sT0, WS_CTX))
    I("v_add_u32 v%d, s%d, v%d" % (vCtx, sT0, vL16))
    I("s_cmp_eq_u32 s%d, 0" % sN)
    I("s_cbranch_scc1 k2_lastpair")
    k.label("k2_loop")
    interval(0, False, False)
    I("s_sub_u32 s%d, s%d, 1" % (sN, sN))
    I("s_cmp_eq_u32 s%d, 0" % sN)
    I("s_cbranch_scc1 k2_penodd")
    interval(1, False, False)
    I("s_branch k2_loop")
    k.label("k2_penodd")
    interval(1, True, False)
    k.label("k2_lastpair")
    interval(0, True, False)
    interval(1, True, True)
    for qs in range(2):
        for sw in ("v_permlane16_swap_b32", "v_permlane32_swap_b32"):
            I("v_mov_b32 v%d, v%d" % (vX0, vL + qs))
            I("%s v%d, v%d" % (sw, vL + qs, vX0))
            I("v_add_f32 v%d, v%d, v%d" % (vL + qs, vL + qs, vX0))
    I("s_add_u32 s%d, s%d, 98304" % (sT0, sSlotR))
    I("s_and_b32 s%d, s%d, 0x1ffff" % (sT0, sT0))
    I("s_add_u32 s%d, s%d, 65536" % (sT1, sSlotR))
    I("s_and_b32 s%d, s%d, 0x1ffff" % (sT1, sT1))
    I("s_cmp_eq_u32 s%d, 0" % sHf)
    I("s_cselect_b32 s%d, s%d, s%d" % (sT2, sT0, sT1))
    I("s_cselect_b32 s%d, s%d, s%d" % (sT3, sT1, sT0))
    I("s_lshl_b32 s%d, s%d, 13" % (sT0, sQs))
    I("s_add_u32 s%d, s%d, s%d" % (sT2, sT2, sT0))
    I("s_add_u32 s%d, s%d, s%d" % (sT3, sT3, sT0))
    I("v_add_u32 v%d, s%d, v%d" % (vMg, sT2, vL16))
    I("v_add_u32 v%d, s%d, v%d" % (vMg + 1, sT3, vL16))
    I("v_mov_b32 v%d, v%d" % (vT, vNM))
    I("v_mov_b32 v%d, v%d" % (vT + 1, vNM + 4))
    I("v_mov_b32 v%d, v%d" % (vT + 2, vL))
    I("v_mov_b32 v%d, v%d" % (vT + 3, vL + 1))
    I("s_waitcnt lgkmcnt(0)")
    I("s_barrier")
    I("ds_write_b128 v%d, %s" % (vMg + 2, vr(vT, 4)))
    Lh1, Ljoin = "k2_mg1", "k2_mgj"
    I("s_cmp_eq_u32 s%d, 1" % sHf)
    I("s_cbranch_scc1 %s" % Lh1)
    def merge(hf):
        own, snd = vO + 32 * hf, vO + 32 * (1 - hf)
        for i in range(8):
            I("ds_write_b128 v%d, %s offset:%d" % (vMg, vr(snd + 4 * i, 4), 1024 * i))
        I("s_waitcnt lgkmcnt(0)")
        I("s_barrier")
        I("ds_read_b128 %s, v%d" % (vr(vT + 4, 4), vMg + 3))
        for i in range(8):
            I("ds_read_b128 %s, v%d offset:%d" % (vr(snd + 4 * i, 4), vMg + 1, 1024 * i))
        I("s_waitcnt lgkmcnt(8)")
        co, ct = (vX0, vX1), (vX2, vX3)
        for qs in range(2):
            I("v_min_f32 v%d, v%d, v%d" % (vSum, vT + qs, vT + 4 + qs))
            I("v_sub_f32 v%d, v%d, v%d" % (co[qs], vSum, vT + qs))
            I("v_sub_f32 v%d, v%d, v%d" % (ct[qs], vSum, vT + 4 + qs))
            I("v_exp_f32 v%d, v%d" % (co[qs], co[qs]))
            I("v_exp_f32 v%d, v%d" % (ct[qs], ct[qs]))
            I("v_mul_f32 v%d, v%d, v%d" % (vSum, co[qs], vT + 2 + qs))
            I("v_fmac_f32 v%d, v%d, v%d" % (vSum, ct[qs], vT + 6 + qs))
            I("v_rcp_f32 v%d, v%d" % (vSum, vSum))
            I("v_mul_f32 v%d, v%d, v%d" % (co[qs], co[qs], vSum))
            I("v_mul_f32 v%d, v%d, v%d" % (ct[qs], ct[qs], vSum))
        for db in range(4):
            for qs in range(2):
                for i in range(4):
                    o = own + 8 * db + 4 * qs + i
                    I("v_mul_f32 v%d, v%d, v%d" % (o, o, co[qs]))
        I("s_waitcnt lgkmcnt(0)")
        I("s_barrier")
        for x in dma_kv_list(): I(x)
        for qs in range(2):
            for j in range(2):
                dst = vP[1] + 0 if False else vT + 4 * ((2 * qs + j) % 2)
                for hh in range(2):
                    db = 2 * j + hh
                    for i in range(4):
                        o = own + 8 * db + 4 * qs + i
                        I("v_fmac_f32 v%d, v%d, v%d" % (o, snd + 8 * db + 4 * qs + i, ct[qs]))
                    for q in range(2):
                        o = own + 8 * db + 4 * qs + 2 * q
                        I("v_cvt_pk_bf16_f32 v%d, v%d, v%d" % (dst + 2 * hh + q, o, o + 1))
                I("s_mov_b32 s%d, %d" % (sT0, qs * 131072))
                I("buffer_store_dwordx4 %s, v%d, s[%d:%d], s%d offen offset:%d" % (vr(dst, 4), vCtx, sWS, sWS + 3, sT0, 1024 * j))
    merge(0)
    I("s_branch %s" % Ljoin)
    k.label(Lh1)
    merge(1)
    k.label(Ljoin)
    I("s_cmp_eq_u32 s%d, 1" % sPass)
    I("s_cbranch_scc1 k2_done")
    st.stamp()
    I("s_mov_b32 s%d, 1" % sPass)
    I("s_mov_b32 s%d, s%d" % (sQb, sA))
    for i in range(32): I("v_mov_b32 v%d, v%d" % (vQC + i, vQN + i))
    I("s_branch k2_init")
    k.label("k2_done")
    st.stamp()
    st.dump(sWS, sWv, vX0, sT0, 8, region=1)
    I("s_endpgm")
    for f in fixups: emit_fixup(*f)
    k.label(L_end)
    I("s_endpgm")
    return k
```

```python
from fw import *
from layout import *
from k1 import srd, BIG

GC1 = -2.0 * math.sqrt(2.0 / math.pi) * LOG2E
GC2 = GC1 * 0.044715

CFG = {
    3: dict(KS=128, NB=5, MB=1, ka_w=KA_WO, ldw=1280, wbytes=4096 * 640 * 2, act=WS_CTX, R=7, D=24),
    4: dict(KS=20, NB=5, MB=1, ka_w=KA_W1, ldw=1280, wbytes=640 * 640 * 2, act=WS_Y, R=5, D=20),
    5: dict(KS=20, NB=5, MB=1, ka_w=KA_W2, ldw=1280, wbytes=640 * 640 * 2, act=WS_HH, R=5, D=20),
    6: dict(KS=20, NB=7, MB=2, ka_w=KA_W3, ldw=3456, wbytes=640 * 1728 * 2, act=WS_X1, R=5, D=20),
    7: dict(KS=54, NB=5, MB=1, ka_w=KA_W4, ldw=1280, wbytes=1728 * 640 * 2, act=WS_U, R=7, D=24),
}

def gen_gemm(idx):
    c = CFG[idx]
    KS, NB, MB, ldw, R, D = c["KS"], c["NB"], c["MB"], c["ldw"], c["R"], c["D"]
    NST = (KS + 3) // 4
    RS = NB * 32
    KB = NB * 1024
    SB_ = 4 * KB
    k = Kern("k%d_kernel" % idx, 256, 256, R * SB_)
    I = k.I
    vm = Cnt(k, "vmcnt", 63)
    sW, sWS, sX = 8, 12, 16
    sWv, sRb, sNt, sNb0, sT0, sT1, sT2, sT3, sSo, sM0b, sWo = 20, 21, 22, 23, 24, 25, 26, 27, 28, 29, 30
    sOff = 32
    sPtr = 40
    sC1, sC2 = 48, 49
    p = 0
    def alloc(n, al=1):
        nonlocal p
        p = (p + al - 1) // al * al
        r = p; p += n
        return r
    alloc(1)
    vAcc = alloc(MB * NB * 4, 4)
    vSp = alloc(NB * 4, 4) if idx in (4, 6) else None
    aWf = 0
    aAct = 2 * NB * 4
    aSpB = aAct + D * MB * 4
    vPk = alloc(28, 4)
    vS8_ = alloc(16, 4)
    vDW = alloc(NB)
    vA = alloc(3)
    vAo = alloc(4)
    vLane, vL16, vVec, vFo = alloc(1), alloc(1), alloc(1), alloc(MB)
    vT = alloc(12, 4)
    vE = alloc(64, 4)
    vRow = alloc(8, 4)
    vSpo = alloc(1)
    L_end = "k%d_end" % idx
    I("s_cmp_ge_u32 s2, 256")
    I("s_cbranch_scc1 %s" % L_end)
    st = Stamps(k, 60, 16)
    st.stamp(True); st.stamp()
    I("s_load_dwordx2 s[%d:%d], s[0:1], %d" % (sPtr, sPtr + 1, c["ka_w"]))
    I("s_load_dwordx2 s[%d:%d], s[0:1], %d" % (sPtr + 2, sPtr + 3, KA_WS))
    if idx == 3: I("s_load_dwordx2 s[%d:%d], s[0:1], %d" % (sPtr + 4, sPtr + 5, KA_X))
    if idx == 7: I("s_load_dwordx2 s[%d:%d], s[0:1], %d" % (sPtr + 4, sPtr + 5, KA_OUT))
    I("v_lshrrev_b32 v%d, 6, v0" % vT)
    I("v_and_b32 v%d, 63, v0" % vLane)
    I("v_readfirstlane_b32 s%d, v%d" % (sWv, vT))
    I("v_lshlrev_b32 v%d, 4, v%d" % (vL16, vLane))
    I("s_and_b32 s%d, s2, 7" % sT0)
    I("s_lshr_b32 s%d, s2, 3" % sT1)
    if MB == 1:
        I("s_and_b32 s%d, s%d, 3" % (sRb, sT1))
        I("s_lshl_b32 s%d, s%d, 2" % (sT0, sT0))
        I("s_add_u32 s%d, s%d, s%d" % (sRb, sRb, sT0))
        I("s_lshr_b32 s%d, s2, 5" % sNt)
        I("s_mul_i32 s%d, s%d, 5" % (sNb0, sNt))
    else:
        I("s_and_b32 s%d, s%d, 1" % (sRb, sT1))
        I("s_lshl_b32 s%d, s%d, 1" % (sT0, sT0))
        I("s_add_u32 s%d, s%d, s%d" % (sRb, sRb, sT0))
        I("s_lshr_b32 s%d, s2, 4" % sNt)
        I("s_mul_i32 s%d, s%d, 7" % (sNb0, sNt))
        I("s_min_u32 s%d, s%d, 101" % (sNb0, sNb0))
    I("s_lshl_b32 s%d, s%d, 2" % (sT0, sRb))
    I("s_add_u32 s%d, s%d, s%d" % (sT0, sT0, sWv))
    I("s_mul_i32 s%d, s%d, %d" % (sRb, sT0, MB))
    CPR = 2 * NB
    M = -(-65536 // CPR)
    assert all((f * M) >> 16 == f // CPR for f in range(64 * NB))
    I("s_lshl_b32 s%d, s%d, 5" % (sT0, sNb0))
    for i in range(NB):
        I("v_add_u32 v%d, %d, v%d" % (vT, 64 * i, vLane))
        I("v_mul_u32_u24 v%d, %d, v%d" % (vT + 1, M, vT))
        I("v_lshrrev_b32 v%d, 16, v%d" % (vT + 1, vT + 1))
        I("v_mul_u32_u24 v%d, %d, v%d" % (vT + 2, ldw - CPR * 16, vT + 1))
        I("v_lshl_add_u32 v%d, v%d, 4, v%d" % (vT + 2, vT, vT + 2))
        I("s_sub_u32 s%d, s%d, %d" % (sT1, sT0, 1024 * (i % 4)))
        I("v_add_u32 v%d, s%d, v%d" % (vDW + i, sT1, vT + 2))
    I("s_mul_i32 s%d, s%d, %d" % (sM0b, sWv, KB))
    I("s_mul_i32 s%d, s%d, %d" % (sWo, sWv, 32 * ldw))
    if idx != 5:
        for mb in range(MB):
            I("s_add_u32 s%d, s%d, %d" % (sT0, sRb, mb))
            I("s_mul_i32 s%d, s%d, %d" % (sT0, sT0, KS * 1024))
            I("s_add_u32 s%d, s%d, 0x%x" % (sT0, sT0, c["act"]))
            I("v_add_u32 v%d, s%d, v%d" % (vAo + mb, sT0, vL16))
    else:
        I("v_and_b32 v%d, 15, v%d" % (vT, vLane))
        I("s_lshl_b32 s%d, s%d, 4" % (sT0, sRb))
        I("v_add_u32 v%d, s%d, v%d" % (vT, sT0, vT))
        I("v_and_b32 v%d, 0x300, v%d" % (vT + 1, vL16))
        I("v_add_u32 v%d, 0x%x, v%d" % (vT + 1, c["act"], vT + 1))
        I("v_mov_b32 v%d, 0x%x" % (vT + 4, BIG))
        for gi, dl in enumerate((-1, 1, -2, 2)):
            I("v_add_u32 v%d, %d, v%d" % (vT + 2, dl, vT))
            I("v_cmp_gt_u32 vcc, 2048, v%d" % (vT + 2))
            I("v_lshrrev_b32 v%d, 4, v%d" % (vT + 3, vT + 2))
            I("v_mul_u32_u24 v%d, 20480, v%d" % (vT + 3, vT + 3))
            I("v_and_b32 v%d, 15, v%d" % (vT + 2, vT + 2))
            I("v_lshl_add_u32 v%d, v%d, 4, v%d" % (vT + 3, vT + 2, vT + 3))
            I("v_add_u32 v%d, v%d, v%d" % (vT + 3, vT + 3, vT + 1))
            I("v_cndmask_b32 v%d, v%d, v%d, vcc" % (vAo + gi, vT + 4, vT + 3))
    if idx == 4:
        I("v_and_b32 v%d, 15, v%d" % (vT, vLane))
        I("v_cmp_gt_u32 vcc, 3, v%d" % vT)
        I("v_add_u32 v%d, 0x%x, v%d" % (vT + 1, WS_SPEC, vL16))
        I("v_mov_b32 v%d, 0x%x" % (vT + 2, BIG))
        I("v_cndmask_b32 v%d, v%d, v%d, vcc" % (vSpo, vT + 2, vT + 1))
    I("s_waitcnt lgkmcnt(0)")
    srd(k, sW, sPtr, sPtr + 1, c["wbytes"])
    srd(k, sWS, sPtr + 2, sPtr + 3, WS_SIZE)

    def dmaW(s):
        base = (s % R) * SB_
        I("s_add_u32 s%d, s%d, %d" % (sSo, sWo, s * 128 * ldw))
        if 4 * s + 3 >= KS: I("s_min_u32 s%d, s%d, %d" % (sSo, sSo, (KS - 1) * 32 * ldw))
        for i in range(NB):
            if i % 4 == 0: I("s_add_u32 m0, s%d, %d" % (sM0b, base + 1024 * i))
            I("buffer_load_dwordx4 v%d, s[%d:%d], s%d offen offset:%d lds" % (vDW + i, sW, sW + 3, sSo, 1024 * (i % 4))); vm.issue("w%d" % s)
    def ldact(ks):
        I("s_mov_b32 s%d, %d" % (sSo, ks * 1024))
        for mb in range(MB):
            va = vAo + (ks // 5 if idx == 5 else mb)
            I("buffer_load_dwordx4 %s, v%d, s[%d:%d], s%d offen" % (ar(aAct + 4 * (MB * (ks % D) + mb), 4), va, sWS, sWS + 3, sSo)); vm.issue("a%d" % ks)
        if idx == 4:
            I("buffer_load_dwordx4 %s, v%d, s[%d:%d], s%d offen" % (ar(aSpB + 4 * (ks % D), 4), vSpo, sWS, sWS + 3, sSo)); vm.issue("a%d" % ks)
    nact = 0
    npre = min(R, NST)
    for s in range(npre):
        dmaW(s)
        for ks in range(4 * s, min(4 * s + 4, KS, D - 1)):
            ldact(ks); nact = ks + 1
        if s == 0:
            I("v_lshrrev_b32 v%d, 2, v%d" % (vT, vLane))
            I("v_mul_u32_u24 v%d, %d, v%d" % (vT, RS, vT))
            I("v_and_b32 v%d, 3, v%d" % (vT + 1, vLane))
            I("v_lshl_add_u32 v%d, v%d, 3, v%d" % (vA, vT + 1, vT))
            I("v_add_u32 v%d, 65536, v%d" % (vA + 1, vA))
            I("v_add_u32 v%d, 131072, v%d" % (vA + 2, vA))
            for nb in range(NB):
                I("s_add_u32 s%d, s%d, %d" % (sT0, sNb0, nb))
                I("s_lshr_b32 s%d, s%d, 1" % (sT1, sT0))
                I("s_lshl_b32 s%d, s%d, 10" % (sT1, sT1))
                I("s_and_b32 s%d, s%d, 1" % (sT0, sT0))
                I("s_lshl_b32 s%d, s%d, 3" % (sT0, sT0))
                I("s_add_u32 s%d, s%d, s%d" % (sOff + nb, sT0, sT1))
            I("v_lshrrev_b32 v%d, 4, v%d" % (vT, vLane))
            I("s_lshl_b32 s%d, s%d, 6" % (sT0, sNb0))
            I("v_lshlrev_b32 v%d, 4, v%d" % (vVec, vT))
            I("v_add_u32 v%d, s%d, v%d" % (vVec, sT0, vVec))
            OKS = 54 if idx == 6 else 20
            for mb in range(MB):
                I("s_add_u32 s%d, s%d, %d" % (sT0, sRb, mb))
                I("s_mul_i32 s%d, s%d, %d" % (sT0, sT0, OKS * 1024))
                I("v_add_u32 v%d, s%d, v%d" % (vFo + mb, sT0, vL16))
            if idx == 6:
                I("v_mov_b32 v%d, 0x3f803f80" % vT)
                for i in range(4): I("v_accvgpr_write_b32 a%d, v%d" % (aSpB + i, vT))
            if idx in (3, 7): srd(k, sX, sPtr + 4, sPtr + 5, 2048 * 640 * 2)
    st.stamp()
    def ldvec(dst, seg):
        I("s_mov_b32 s%d, %d" % (sSo, WS_MOD + seg * 2560))
        for nb in range(NB):
            I("buffer_load_dwordx4 %s, v%d, s[%d:%d], s%d offen offset:%d" % (vr(dst + 4 * nb, 4), vVec, sWS, sWS + 3, sSo, 64 * nb)); vm.issue("e")
    def ldf16(dst, base):
        I("v_add_u32 v%d, 0x%x, v%d" % (vT + 8, base, vFo))
        for nb in range(NB):
            I("buffer_load_dwordx2 %s, v%d, s[%d:%d], s%d offen" % (vr(dst + 2 * nb, 2), vT + 8, sWS, sWS + 3, sOff + nb)); vm.issue("e")
    def rowoff(dst, mul, mb=0):
        I("v_and_b32 v%d, 15, v%d" % (dst, vLane))
        I("s_add_u32 s%d, s%d, %d" % (sT0, sRb, mb))
        I("s_lshl_b32 s%d, s%d, 4" % (sT0, sT0))
        I("v_add_u32 v%d, s%d, v%d" % (dst, sT0, dst))
        I("v_mul_u32_u24 v%d, %d, v%d" % (dst, mul, dst))
    vRM = vRow + 7
    def allred(v, tmp):
        for sw in ("v_permlane16_swap_b32", "v_permlane32_swap_b32"):
            I("v_mov_b32 v%d, v%d" % (tmp, v))
            I("%s v%d, v%d" % (sw, v, tmp))
            I("v_add_f32 v%d, v%d, v%d" % (v, v, tmp))
    def pre_epilogue():
        if idx in (3, 7):
            rowoff(vRM, 1280)
            I("v_lshrrev_b32 v%d, 1, v%d" % (vT, vVec))
            I("v_add_u32 v%d, v%d, v%d" % (vRM, vRM, vT))
        if idx == 3:
            ldvec(vE, 2); ldvec(vE + 20, 4); ldvec(vE + 40, 3)
        if idx == 4:
            rowoff(vT + 8, 256)
            I("v_and_b32 v%d, 0x30, v%d" % (vT, vLane))
            I("v_lshlrev_b32 v%d, 2, v%d" % (vT, vT))
            I("v_add_u32 v%d, v%d, v%d" % (vT + 8, vT + 8, vT))
            I("s_mov_b32 s%d, 0x%x" % (sSo, WS_ST1))
            for i in range(4):
                I("buffer_load_dwordx4 %s, v%d, s[%d:%d], s%d offen offset:%d" % (vr(vE + 4 * i, 4), vT + 8, sWS, sWS + 3, sSo, 16 * i)); vm.issue("e")
            I("s_mov_b32 s%d, 0x%x" % (sSo, WS_ST1 + 2048 * 256))
            for i in range(4):
                I("buffer_load_dwordx4 %s, v%d, s[%d:%d], s%d offen offset:%d" % (vr(vE + 16 + 4 * i, 4), vT, sWS, sWS + 3, sSo, 16 * i)); vm.issue("e")
        if idx == 5:
            ldvec(vE, 4); ldvec(vE + 20, 3); ldf16(vE + 40, WS_X2)
            rowoff(vT + 8, 8)
            I("s_mov_b32 s%d, 0x%x" % (sSo, WS_MU))
            I("buffer_load_dwordx2 %s, v%d, s[%d:%d], s%d offen" % (vr(vRow, 2), vT + 8, sWS, sWS + 3, sSo)); vm.issue("e")
        if idx == 6:
            for mb in range(MB):
                rowoff(vT + 8, 64, mb)
                I("v_and_b32 v%d, 0x30, v%d" % (vT, vLane))
                I("v_add_u32 v%d, v%d, v%d" % (vT + 8, vT + 8, vT))
                I("s_mov_b32 s%d, 0x%x" % (sSo, WS_ST2))
                I("buffer_load_dwordx4 %s, v%d, s[%d:%d], s%d offen" % (vr(vE + 4 * mb, 4), vT + 8, sWS, sWS + 3, sSo)); vm.issue("e")
        if idx == 7:
            ldvec(vE, 5); ldf16(vE + 20, WS_X2); ldf16(vE + 30, WS_X1)
    vXl = alloc(10, 2) if idx == 3 else None
    def pre_x():
        for nb in range(NB):
            I("buffer_load_dwordx2 %s, v%d, s[%d:%d], 0 offen offset:%d" % (vr(vXl + 2 * nb, 2), vRM, sX, sX + 3, 32 * nb)); vm.issue("e")
    INV = f32bits(1.0 / 640)
    def row_scalars():
        if idx == 4:
            vm.wait("e")
            for base in (vE, vE + 16):
                for i in range(6):
                    I("v_add_f32 v%d, v%d, v%d" % (base + i, base + i, base + 8 + i))
                    I("v_mul_f32 v%d, 0x%x, v%d" % (base + i, INV, base + i))
                for i in range(6 if base == vE else 5): allred(base + i, vT + (i % 4))
            mx, mxx, my, myy, myg, mysb = [vE + i for i in range(6)]
            cg, csb, cgg, cgsb, csbsb = [vE + 16 + i for i in range(5)]
            mu1, r1, t, u, mu2, r2 = vRow + 4, vRow + 5, vT, vT + 1, vT + 2, vT + 3
            I("v_mov_b32 v%d, v%d" % (mu1, mx))
            I("v_fma_f32 v%d, -v%d, v%d, v%d" % (t, mx, mx, mxx))
            I("v_max_f32 v%d, 0, v%d" % (t, t))
            I("v_add_f32 v%d, 0x%x, v%d" % (t, f32bits(1e-5), t))
            I("v_rsq_f32 v%d, v%d" % (r1, t))
            I("v_fma_f32 v%d, -v%d, v%d, v%d" % (t, mu1, cg, my))
            I("v_fma_f32 v%d, v%d, v%d, v%d" % (mu2, r1, t, csb))
            I("v_add_f32 v%d, v%d, v%d" % (t, myg, myg))
            I("v_fma_f32 v%d, -v%d, v%d, v%d" % (t, mu1, cgg, t))
            I("v_fma_f32 v%d, -v%d, v%d, v%d" % (t, mu1, t, myy))
            I("v_fma_f32 v%d, -v%d, v%d, v%d" % (u, mu1, cgsb, mysb))
            I("v_add_f32 v%d, v%d, v%d" % (u, u, u))
            I("v_fma_f32 v%d, v%d, v%d, v%d" % (t, r1, t, u))
            I("v_fma_f32 v%d, v%d, v%d, v%d" % (t, r1, t, csbsb))
            I("v_fma_f32 v%d, -v%d, v%d, v%d" % (t, mu2, mu2, t))
            I("v_max_f32 v%d, 0, v%d" % (t, t))
            I("v_add_f32 v%d, 0x%x, v%d" % (t, f32bits(1e-5), t))
            I("v_rsq_f32 v%d, v%d" % (r2, t))
            I("v_mul_f32 v%d, v%d, v%d" % (vRow, r1, r2))
            I("v_mul_f32 v%d, v%d, v%d" % (vRow + 1, vRow, mu1))
            I("v_sub_f32 v%d, 0, v%d" % (vRow + 1, vRow + 1))
            I("v_mov_b32 v%d, v%d" % (vRow + 2, r2))
            I("v_mul_f32 v%d, v%d, v%d" % (vRow + 3, r2, mu2))
            I("v_sub_f32 v%d, 0, v%d" % (vRow + 3, vRow + 3))
            rowoff(vT + 8, 8)
            I("s_cmp_eq_u32 s%d, 0" % sNt)
            I("s_cselect_b32 s%d, 0x%x, 0x%x" % (sT0, WS_MU, BIG)) if False else None
            I("s_mov_b32 s%d, 0x%x" % (sT1, BIG))
            I("s_cselect_b32 s%d, 0x%x, s%d" % (sT0, WS_MU, sT1))
            I("v_add_u32 v%d, s%d, v%d" % (vT + 8, sT0, vT + 8))
            I("buffer_store_dwordx2 %s, v%d, s[%d:%d], 0 offen" % (vr(vRow + 4, 2), vT + 8, sWS, sWS + 3)); vm.issue("mu")
        if idx == 6:
            vm.wait("e")
            for mb in range(MB):
                b = vE + 4 * mb
                for i in range(2):
                    I("v_add_f32 v%d, v%d, v%d" % (b + i, b + i, b + 2 + i))
                    I("v_mul_f32 v%d, 0x%x, v%d" % (b + i, INV, b + i))
                    allred(b + i, vT + i)
                I("v_fma_f32 v%d, -v%d, v%d, v%d" % (vT, b, b, b + 1))
                I("v_max_f32 v%d, 0, v%d" % (vT, vT))
                I("v_add_f32 v%d, 0x%x, v%d" % (vT, f32bits(1e-5), vT))
                I("v_rsq_f32 v%d, v%d" % (vRow + 2 * mb, vT))
                I("v_mul_f32 v%d, v%d, v%d" % (vRow + 2 * mb + 1, vRow + 2 * mb, b))
                I("v_sub_f32 v%d, 0, v%d" % (vRow + 2 * mb + 1, vRow + 2 * mb + 1))
    pre_epilogue()
    if idx == 3: pre_x()
    I("s_mov_b32 s%d, 0x%x" % (sC1, f32bits(GC1)))
    I("s_mov_b32 s%d, 0x%x" % (sC2, f32bits(GC2)))

    def rdW(ks):
        o = []
        kb = ((ks // 4) % R) * SB_ + (ks % 4) * KB
        for nb in range(NB):
            for hf in range(2):
                off = kb + hf * 16 * RS + nb * 32
                o.append("ds_read_b64_tr_b16 %s, v%d offset:%d" % (ar(aWf + 4 * NB * (ks & 1) + 4 * nb + 2 * hf, 2), vA + off // 65536, off % 65536))
        return o
    def mfs(ks):
        o = []
        for nb in range(NB):
            wf = ar(aWf + 4 * NB * (ks & 1) + 4 * nb, 4)
            for mb in range(MB):
                acc = vr(vAcc + 4 * (NB * mb + nb), 4)
                o.append("v_mfma_f32_16x16x32_bf16 %s, %s, %s, %s" % (acc, wf, ar(aAct + 4 * (MB * (ks % D) + mb), 4), "0" if ks == 0 else acc))
            if vSp is not None:
                acc = vr(vSp + 4 * nb, 4)
                b = aSpB + (4 * (ks % D) if idx == 4 else 0)
                o.append("v_mfma_f32_16x16x32_bf16 %s, %s, %s, %s" % (acc, wf, ar(b, 4), "0" if ks == 0 else acc))
        return o
    vm.wait("w0")
    I("s_barrier")
    st.stamp()
    for x in rdW(0): I(x)
    nst_issued = npre
    for ks in range(KS):
        vm.wait("a%d" % ks)
        I("s_waitcnt lgkmcnt(0)")
        if (ks + 1) % 4 == 0 and ks + 1 < KS:
            s = (ks + 1) // 4
            vm.wait("w%d" % s)
            I("s_barrier")
            if nst_issued < NST:
                dmaW(nst_issued); nst_issued += 1
        rd = rdW(ks + 1) if ks + 1 < KS else []
        mf = mfs(ks)
        per = -(-len(rd) // len(mf)) if rd else 0
        per = max(per, 2) if rd else 0
        for m_ in mf:
            for x in rd[:per]: I(x)
            rd = rd[per:]
            I(m_)
        if nact < KS:
            ldact(nact); nact += 1
        if ks == KS - 6: row_scalars()
    st.stamp()
    def gelu(v, t):
        I("v_mul_f32 v%d, v%d, v%d" % (t, v, v))
        I("v_fma_f32 v%d, v%d, s%d, v%d" % (t, t, sC2, vRow + 6))
        I("v_mul_f32 v%d, v%d, v%d" % (t, t, v))
        I("v_exp_f32 v%d, v%d" % (t, t))
        I("v_add_f32 v%d, 1.0, v%d" % (t, t))
        I("v_rcp_f32 v%d, v%d" % (t, t))
        I("v_mul_f32 v%d, v%d, v%d" % (v, v, t))
    def gelu4(vs):
        ts = [vT + i for i in range(4)]
        for v, t in zip(vs, ts): I("v_mul_f32 v%d, v%d, v%d" % (t, v, v))
        for v, t in zip(vs, ts): I("v_fma_f32 v%d, v%d, s%d, v%d" % (t, t, sC2, vRow + 6))
        for v, t in zip(vs, ts): I("v_mul_f32 v%d, v%d, v%d" % (t, t, v))
        for v, t in zip(vs, ts): I("v_exp_f32 v%d, v%d" % (t, t))
        for v, t in zip(vs, ts): I("v_add_f32 v%d, 1.0, v%d" % (t, t))
        for v, t in zip(vs, ts): I("v_rcp_f32 v%d, v%d" % (t, t))
        for v, t in zip(vs, ts): I("v_mul_f32 v%d, v%d, v%d" % (v, v, t))
    def unpack(dst, src):
        for q in range(2):
            I("v_lshlrev_b32 v%d, 16, v%d" % (dst + 2 * q, src + q))
            I("v_and_b32 v%d, 0xffff0000, v%d" % (dst + 2 * q + 1, src + q))
    def stf16(src4, addr, nb, pk):
        I("v_cvt_pk_bf16_f32 v%d, v%d, v%d" % (pk, src4, src4 + 1))
        I("v_cvt_pk_bf16_f32 v%d, v%d, v%d" % (pk + 1, src4 + 2, src4 + 3))
        I("buffer_store_dwordx2 %s, v%d, s[%d:%d], s%d offen" % (vr(pk, 2), addr, sWS, sWS + 3, sOff + nb))
    def red4(a, b, cc, d):
        I("v_permlane16_swap_b32 v%d, v%d" % (a, b))
        I("v_permlane16_swap_b32 v%d, v%d" % (cc, d))
        I("v_add_f32 v%d, v%d, v%d" % (a, a, b))
        I("v_add_f32 v%d, v%d, v%d" % (cc, cc, d))
        I("v_permlane32_swap_b32 v%d, v%d" % (a, cc))
        I("v_add_f32 v%d, v%d, v%d" % (a, a, cc))
    vm.wait("e")
    vS8 = vS8_
    if idx in (4, 6): I("v_mov_b32 v%d, s%d" % (vRow + 6, sC1))
    if idx == 3:
        I("v_add_u32 v%d, 0x%x, v%d" % (vT + 8, WS_X2, vFo))
        I("v_add_u32 v%d, 0x%x, v%d" % (vT + 9, WS_Y, vFo))
        for i in range(8): I("v_mov_b32 v%d, 0" % (vS8 + i))
        for nb in range(NB):
            a = vAcc + 4 * nb
            unpack(vT, vXl + 2 * nb)
            for r in range(4):
                I("v_fma_f32 v%d, v%d, v%d, v%d" % (a + r, a + r, vE + 4 * nb + r, vT + r))
                I("v_mul_f32 v%d, v%d, v%d" % (vT + 4 + r, a + r, vE + 20 + 4 * nb + r))
            stf16(a, vT + 8, nb, vPk + 4 * nb)
            stf16(vT + 4, vT + 9, nb, vPk + 4 * nb + 2)
            for r in range(4):
                y = vT + 4 + r
                I("v_add_f32 v%d, v%d, v%d" % (vS8, vS8, a + r))
                I("v_fmac_f32 v%d, v%d, v%d" % (vS8 + 1, a + r, a + r))
                I("v_add_f32 v%d, v%d, v%d" % (vS8 + 2, vS8 + 2, y))
                I("v_fmac_f32 v%d, v%d, v%d" % (vS8 + 3, y, y))
                I("v_fmac_f32 v%d, v%d, v%d" % (vS8 + 4, y, vE + 20 + 4 * nb + r))
                I("v_fmac_f32 v%d, v%d, v%d" % (vS8 + 5, y, vE + 40 + 4 * nb + r))
        def st_stats(rowreg):
            red4(vS8, vS8 + 1, vS8 + 2, vS8 + 3)
            red4(vS8 + 4, vS8 + 5, vS8 + 6, vS8 + 7)
            I("v_lshrrev_b32 v%d, 4, v%d" % (vT, vLane))
            I("v_lshl_add_u32 v%d, v%d, 2, v%d" % (rowreg, vT, rowreg))
            I("s_lshl_b32 s%d, s%d, 5" % (sT0, sNt))
            I("s_add_u32 s%d, s%d, 0x%x" % (sT0, sT0, WS_ST1))
            I("buffer_store_dword v%d, v%d, s[%d:%d], s%d offen" % (vS8, rowreg, sWS, sWS + 3, sT0))
            I("buffer_store_dword v%d, v%d, s[%d:%d], s%d offen offset:16" % (vS8 + 4, rowreg, sWS, sWS + 3, sT0))
        rowoff(vT + 10, 256)
        st_stats(vT + 10)
        Lsk = k.newlabel("nocst")
        I("s_cmp_lg_u32 s%d, 0" % sRb)
        I("s_cbranch_scc1 %s" % Lsk)
        vS8 = vS8_ + 8
        for i in range(8): I("v_mov_b32 v%d, 0" % (vS8 + i))
        for j in range(20):
            g_, s_ = vE + 20 + j, vE + 40 + j
            I("v_add_f32 v%d, v%d, v%d" % (vS8, vS8, g_))
            I("v_add_f32 v%d, v%d, v%d" % (vS8 + 1, vS8 + 1, s_))
            I("v_fmac_f32 v%d, v%d, v%d" % (vS8 + 2, g_, g_))
            I("v_fmac_f32 v%d, v%d, v%d" % (vS8 + 3, g_, s_))
            I("v_fmac_f32 v%d, v%d, v%d" % (vS8 + 4, s_, s_))
        I("v_mov_b32 v%d, %d" % (vT + 10, 2048 * 256))
        st_stats(vT + 10)
        k.label(Lsk)
    if idx == 4:
        I("v_add_u32 v%d, 0x%x, v%d" % (vT + 8, WS_HH, vFo))
        for nb in range(NB):
            a = vAcc + 4 * nb
            for r in range(4):
                I("v_mul_f32 v%d, v%d, v%d" % (a + r, a + r, vRow))
            for j in range(3):
                for r in range(4):
                    I("v_fmac_f32_dpp v%d, v%d, v%d row_newbcast:%d row_mask:0xf bank_mask:0xf" % (a + r, vSp + 4 * nb + r, vRow + 1 + j, j))
            gelu4([a + r for r in range(4)])
            stf16(a, vT + 8, nb, vPk + 2 * nb)
    if idx == 5:
        I("v_add_u32 v%d, 0x%x, v%d" % (vT + 8, WS_X1, vFo))
        for i in range(2): I("v_mov_b32 v%d, 0" % (vS8 + i))
        for nb in range(NB):
            a = vAcc + 4 * nb
            unpack(vT, vE + 40 + 2 * nb)
            for r in range(4):
                I("v_sub_f32 v%d, v%d, v%d" % (vT + r, vT + r, vRow))
                I("v_mul_f32 v%d, v%d, v%d" % (vT + r, vT + r, vRow + 1))
                I("v_fma_f32 v%d, v%d, v%d, v%d" % (vT + r, vT + r, vE + 4 * nb + r, vE + 20 + 4 * nb + r))
                I("v_add_f32 v%d, v%d, v%d" % (a + r, a + r, vT + r))
            stf16(a, vT + 8, nb, vPk + 2 * nb)
            for r in range(4):
                I("v_add_f32 v%d, v%d, v%d" % (vS8, vS8, a + r))
                I("v_fmac_f32 v%d, v%d, v%d" % (vS8 + 1, a + r, a + r))
        I("v_permlane16_swap_b32 v%d, v%d" % (vS8, vS8 + 1))
        I("v_add_f32 v%d, v%d, v%d" % (vS8, vS8, vS8 + 1))
        I("v_mov_b32 v%d, v%d" % (vS8 + 1, vS8))
        I("v_permlane32_swap_b32 v%d, v%d" % (vS8, vS8 + 1))
        I("v_add_f32 v%d, v%d, v%d" % (vS8, vS8, vS8 + 1))
        rowoff(vT + 10, 64)
        I("v_and_b32 v%d, 16, v%d" % (vT, vLane))
        I("v_lshrrev_b32 v%d, 2, v%d" % (vT, vT))
        I("v_add_u32 v%d, v%d, v%d" % (vT + 10, vT + 10, vT))
        I("s_lshl_b32 s%d, s%d, 3" % (sT0, sNt))
        I("s_add_u32 s%d, s%d, 0x%x" % (sT0, sT0, WS_ST2))
        I("buffer_store_dword v%d, v%d, s[%d:%d], s%d offen" % (vS8, vT + 10, sWS, sWS + 3, sT0))
    if idx == 6:
        for mb in range(MB):
            I("v_add_u32 v%d, 0x%x, v%d" % (vT + 8 + mb, WS_U, vFo + mb))
        for mb in range(MB):
            for nb in range(NB):
                a = vAcc + 4 * (NB * mb + nb)
                for r in range(4):
                    I("v_mul_f32 v%d, v%d, v%d" % (a + r, a + r, vRow + 2 * mb))
                for r in range(4):
                    I("v_fmac_f32 v%d, v%d, v%d" % (a + r, vSp + 4 * nb + r, vRow + 2 * mb + 1))
                gelu4([a + r for r in range(4)])
                stf16(a, vT + 8 + mb, nb, vPk + 2 * (NB * mb + nb))
    if idx == 7:
        for nb in range(NB):
            a = vAcc + 4 * nb
            unpack(vT, vE + 20 + 2 * nb)
            unpack(vT + 4, vE + 30 + 2 * nb)
            for r in range(4):
                I("v_add_f32 v%d, v%d, v%d" % (a + r, a + r, vT + 4 + r))
                I("v_fma_f32 v%d, v%d, v%d, v%d" % (a + r, a + r, vE + 4 * nb + r, vT + r))
            pk = vPk + 2 * nb
            I("v_cvt_pk_bf16_f32 v%d, v%d, v%d" % (pk, a, a + 1))
            I("v_cvt_pk_bf16_f32 v%d, v%d, v%d" % (pk + 1, a + 2, a + 3))
            I("buffer_store_dwordx2 %s, v%d, s[%d:%d], 0 offen offset:%d" % (vr(pk, 2), vRM, sX, sX + 3, 32 * nb))
    st.stamp()
    st.dump(sWS, sWv, vT, sT0, 4, region=idx - 1)
    k.label(L_end)
    I("s_endpgm")
    return k

def gen_back(which):
    return [gen_gemm(i) for i in (3, 4, 5, 6, 7) if str(i) in which]
```

```python
WS_MOD  = 0x0000000
WS_SPEC = 0x0008000
WS_MU   = 0x0010000
WS_ST1  = 0x0020000
WS_ST2  = 0x00B0000
WS_HF   = 0x0100000
WS_KV   = 0x0400000
WS_CTX  = 0x2400000
WS_X2   = 0x3400000
WS_Y    = 0x3700000
WS_HH   = 0x3A00000
WS_X1   = 0x3D00000
WS_U    = 0x4000000
WS_SIZE = 0x10000000
KA_X, KA_CKV, KA_WQ, KA_WUK, KA_WUV, KA_WO, KA_BX, KA_W1, KA_W2, KA_W3, KA_W4, KA_C, KA_WMOD, KA_OUT, KA_DBG, KA_WS = [8 * i for i in range(16)]
import math, struct
def f32bits(x): return struct.unpack("<I", struct.pack("<f", x))[0]
LOG2E = math.log2(math.e)
QSCALE = LOG2E / math.sqrt(128.0)
```

```python
import sys
sys.path.insert(0, "gen")
from fw import *
from k1 import gen_k1
NAME = "adaLN_cond__compressed_kv_cla__mixer_s_mlp__prompt"
def header():
    ref = open("cdna_kernels/%s.s.ref" % NAME).read().split("\n")
    out = []
    for ln in ref:
        if ln.startswith(";") and "@launch" not in ln and "Override launch" not in ln and "grid=ceil" not in ln:
            out.append(ln)
        elif not ln.startswith(";"):
            break
    return "\n".join(out) + "\n"
def main(path, which):
    ks = []
    if "1" in which: ks.append(gen_k1())
    if "2" in which:
        from k2 import gen_k2
        ks.append(gen_k2())
    if any(c in which for c in "34567"):
        from kg import gen_back
        ks += gen_back(which)
    for k in ks:
        k.fix(verbose=("-v" in sys.argv))
        k.desc()
        print(k.name, "insns", len(k.items), "nops", k.nops_inserted, "v", k.maxreg("v") + 1, "a", k.maxreg("a") + 1, "s", k.maxreg("s") + 1)
    open(path, "w").write(build_file(header(), ks))
if __name__ == "__main__":
    main(sys.argv[1], sys.argv[2])
```

```python
from fw import *
from layout import *

def srd(k, d, lo, hi, size):
    k.I("s_mov_b32 s%d, s%d" % (d, lo))
    k.I("s_and_b32 s%d, s%d, 0xffff" % (d + 1, hi))
    k.I("s_mov_b32 s%d, 0x%x" % (d + 2, size))
    k.I("s_mov_b32 s%d, 0x20000" % (d + 3))

def wave_sum_to_sgpr(k, v, s):
    for sh in (1, 2, 4, 8):
        k.I("v_add_f32_dpp v%d, v%d, v%d row_ror:%d row_mask:0xf bank_mask:0xf" % (v, v, v, sh))
    k.I("v_add_f32_dpp v%d, v%d, v%d row_bcast:15 row_mask:0xa bank_mask:0xf" % (v, v, v))
    k.I("v_add_f32_dpp v%d, v%d, v%d row_bcast:31 row_mask:0xc bank_mask:0xf" % (v, v, v))
    k.I("v_readlane_b32 s%d, v%d, 63" % (s, v))

BIG = 0x40000000

def gen_k1():
    LDS_RED = 131072
    k = Kern("k1_kernel", 256, 512, 131072 + 2048)
    I = k.I
    vm = Cnt(k, "vmcnt", 63)
    sC, sW, sX, sCc, sWM, sWS, sDBG = 8, 12, 16, 20, 24, 28, 32
    sH, sJ, sWv, sCG, sT0, sT1, sT2, sT3 = 36, 37, 38, 39, 40, 41, 42, 43
    sM0C, sSoC, sSoW = 44, 46, 47
    sMean, sRstd, sSeg, sBig = 48, 49, 50, 51
    sPtr = 52
    sEx = 68
    vAcc = 0
    vCf = 128
    vWf = 160
    vM = 192
    vA = 208
    vSA = 192
    vG = 208
    vX = 224
    vLane, vDC0, vDC1, vDW0, vDW1 = 232, 233, 234, 235, 236
    vCa = 237
    vWa = 239
    vSt = 247
    vT = 248
    vU = 250
    vPoll, vHo0, vHo1, vXo1 = 252, 253, 254, 255
    vTid = vPoll
    L_end = "k1_end"
    I("s_cmp_ge_u32 s2, 256")
    I("s_cbranch_scc1 %s" % L_end)
    st = Stamps(k, 70, 16)
    st.stamp(True); st.stamp()
    I("s_load_dwordx4 s[%d:%d], s[0:1], %d" % (sPtr, sPtr + 3, KA_X))
    I("s_load_dwordx4 s[%d:%d], s[0:1], %d" % (sPtr + 4, sPtr + 7, KA_WUK))
    I("s_load_dwordx4 s[%d:%d], s[0:1], %d" % (sPtr + 8, sPtr + 11, KA_C))
    I("s_load_dwordx4 s[%d:%d], s[0:1], %d" % (sPtr + 12, sPtr + 15, KA_DBG))
    I("v_mov_b32 v%d, v0" % vTid)
    I("v_lshrrev_b32 v%d, 6, v0" % vT)
    I("v_and_b32 v%d, 63, v0" % vLane)
    I("v_readfirstlane_b32 s%d, v%d" % (sWv, vT))
    I("s_and_b32 s%d, s2, 7" % sT0)
    I("s_lshr_b32 s%d, s2, 3" % sT1)
    I("s_and_b32 s%d, s%d, 3" % (sH, sT1))
    I("s_lshl_b32 s%d, s%d, 2" % (sT2, sT0))
    I("s_add_u32 s%d, s%d, s%d" % (sH, sH, sT2))
    I("s_lshr_b32 s%d, s2, 5" % sJ)
    I("s_mul_i32 s%d, s%d, 30" % (sCG, sT0))
    I("s_add_u32 s%d, s%d, s%d" % (sCG, sCG, sT1))
    I("s_cmp_lt_u32 s%d, 30" % sT1)
    I("s_cselect_b32 s%d, 0, 0x%x" % (sBig, BIG))
    I("v_lshrrev_b32 v%d, 2, v%d" % (vT, vLane))
    I("s_lshl_b32 s%d, s%d, 8" % (sT0, sJ))
    I("s_lshl_b32 s%d, s%d, 5" % (sT1, sWv))
    I("s_add_u32 s%d, s%d, s%d" % (sT0, sT0, sT1))
    I("v_add_u32 v%d, s%d, v%d" % (vT, sT0, vT))
    I("v_lshlrev_b32 v%d, 10, v%d" % (vT, vT))
    I("v_lshrrev_b32 v%d, 4, v%d" % (vT + 1, vLane))
    I("v_sub_u32 v%d, 0, v%d" % (vT + 1, vT + 1))
    I("v_xor_b32 v%d, v%d, v%d" % (vT + 1, vT + 1, vLane))
    I("v_and_b32 v%d, 3, v%d" % (vT + 1, vT + 1))
    I("v_lshl_add_u32 v%d, v%d, 4, v%d" % (vDC0, vT + 1, vT))
    I("v_add_u32 v%d, %d, v%d" % (vDC1, 16384 - 1024, vDC0))
    I("v_lshrrev_b32 v%d, 4, v%d" % (vT, vLane))
    I("s_and_b32 s%d, s%d, 1" % (sT0, sWv))
    I("s_lshl_b32 s%d, s%d, 3" % (sT0, sT0))
    I("v_lshlrev_b32 v%d, 1, v%d" % (vT + 1, vT))
    I("v_or_b32 v%d, s%d, v%d" % (vT + 1, sT0, vT + 1))
    I("v_xor_b32 v%d, v%d, v%d" % (vT + 1, vT + 1, vLane))
    I("v_and_b32 v%d, 15, v%d" % (vT + 1, vT + 1))
    I("v_lshlrev_b32 v%d, 4, v%d" % (vT + 1, vT + 1))
    I("v_lshl_add_u32 v%d, v%d, 13, v%d" % (vT, vT, vT + 1))
    I("s_and_b32 s%d, s%d, 3" % (sT0, sWv))
    I("s_lshl_b32 s%d, s%d, 16" % (sT0, sT0))
    I("s_lshl_b32 s%d, s%d, 8" % (sT1, sH))
    I("s_add_u32 s%d, s%d, s%d" % (sT0, sT0, sT1))
    I("v_add_u32 v%d, s%d, v%d" % (vDW0, sT0, vT))
    I("v_add_u32 v%d, %d, v%d" % (vDW1, 32768 - 1024, vDW0))
    I("s_lshl_b32 s%d, s%d, 11" % (sM0C, sWv))
    ROT = int(os.environ.get("ROT", "0"))
    if ROT == 1: I("s_lshr_b32 s45, s2, 3")
    if ROT == 2: I("s_lshr_b32 s45, s2, 4"); I("s_and_b32 s45, s45, 14")
    if ROT == 3: I("s_lshr_b32 s45, s2, 1"); I("s_and_b32 s45, s45, 12")
    I("v_lshrrev_b32 v%d, 1, v0" % vT)
    I("v_mul_u32_u24 v%d, 7680, v%d" % (vT + 1, vT))
    I("v_and_b32 v%d, 1, v0" % vU)
    I("v_lshl_add_u32 v%d, v%d, 4, v%d" % (vT + 1, vU, vT + 1))
    I("s_lshl_b32 s%d, s%d, 5" % (sT2, sCG))
    I("s_add_u32 s%d, s%d, s%d" % (sT2, sT2, sBig))
    I("v_add_u32 v%d, s%d, v%d" % (vT + 1, sT2, vT + 1))
    I("v_lshlrev_b32 v%d, 1, v%d" % (vT, vT))
    I("v_add_u32 v%d, %d, v%d" % (vU, 256 * 7680, vT + 1))
    I("v_add_u32 v%d, %d, v%d" % (vU + 1, 512 * 7680, vT + 1))
    I("s_waitcnt lgkmcnt(0)")
    srd(k, sC, sPtr + 2, sPtr + 3, 2048 * 512 * 2)
    I("s_cmp_lt_u32 s%d, 4" % sWv)
    I("s_cselect_b32 s%d, s%d, s%d" % (sT2, sPtr + 4, sPtr + 6))
    I("s_cselect_b32 s%d, s%d, s%d" % (sT3, sPtr + 5, sPtr + 7))
    srd(k, sW, sT2, sT3, 512 * 4096 * 2)
    def dma(kt):
        stg = (kt % 4) * 32768
        I("s_add_u32 m0, s%d, %d" % (sM0C, stg))
        if ROT:
            I("s_add_u32 s%d, s45, %d" % (sSoW, kt))
            I("s_and_b32 s%d, s%d, 15" % (sSoW, sSoW))
            I("s_lshl_b32 s%d, s%d, 6" % (sSoC, sSoW))
            I("s_lshl_b32 s%d, s%d, 18" % (sSoW, sSoW))
        else:
            I("s_mov_b32 s%d, %d" % (sSoC, kt * 64))
        I("buffer_load_dwordx4 v%d, s[%d:%d], s%d offen lds" % (vDC0, sC, sC + 3, sSoC)); vm.issue("kt%d" % kt)
        I("buffer_load_dwordx4 v%d, s[%d:%d], s%d offen offset:1024 lds" % (vDC1, sC, sC + 3, sSoC)); vm.issue("kt%d" % kt)
        I("s_add_u32 m0, s%d, %d" % (sM0C, stg + 16384))
        if not ROT: I("s_mov_b32 s%d, %d" % (sSoW, kt * 262144))
        I("buffer_load_dwordx4 v%d, s[%d:%d], s%d offen lds" % (vDW0, sW, sW + 3, sSoW)); vm.issue("kt%d" % kt)
        I("buffer_load_dwordx4 v%d, s[%d:%d], s%d offen offset:1024 lds" % (vDW1, sW, sW + 3, sSoW)); vm.issue("kt%d" % kt)
    st.stamp()
    dma(0)
    srd(k, sWM, sPtr + 10, sPtr + 11, 640 * 3840 * 2)
    srd(k, sCc, sPtr + 8, sPtr + 9, 1280)
    srd(k, sX, sPtr + 0, sPtr + 1, 2048 * 640 * 2)
    srd(k, sWS, sPtr + 14, sPtr + 15, WS_SIZE)
    srd(k, sDBG, sPtr + 12, sPtr + 13, 256)
    I("s_barrier")
    dma(1)
    dma(2)
    dma(3)
    st.stamp()
    I("buffer_load_dwordx4 %s, v%d, s[%d:%d], 0 offen" % (vr(vM, 4), vT + 1, sWM, sWM + 3)); vm.issue("mod")
    I("buffer_load_dwordx4 %s, v%d, s[%d:%d], 0 offen" % (vr(vM + 4, 4), vU, sWM, sWM + 3)); vm.issue("mod")
    I("buffer_load_dwordx4 %s, v%d, s[%d:%d], 0 offen" % (vr(vM + 8, 4), vU + 1, sWM, sWM + 3)); vm.issue("mod")
    for i in range(3):
        I("buffer_load_ushort v%d, v%d, s[%d:%d], 0 offen offset:%d" % (vM + 12 + i, vT, sCc, sCc + 3, 512 * i)); vm.issue("mod")
    I("s_lshl_b32 s%d, s2, 7" % sT0)
    I("s_add_u32 s%d, s%d, 0x%x" % (sT0, sT0, WS_FL))
    I("v_lshlrev_b32 v%d, 2, v%d" % (vA, vTid))
    I("v_add_u32 v%d, s%d, v%d" % (vA, sT0, vA))
    I("v_mov_b32 v%d, 0x%x" % (vA + 1, BIG))
    I("v_cmp_gt_u32 vcc, 32, v%d" % vTid)
    I("v_cndmask_b32 v%d, v%d, v%d, vcc" % (vA, vA + 1, vA))
    I("v_mov_b32 v%d, 0" % (vA + 1))
    I("buffer_store_dword v%d, v%d, s[%d:%d], 0 offen" % (vA + 1, vA, sWS, sWS + 3)); vm.issue("fl")
    I("s_lshl_b32 s%d, s2, 3" % sT0)
    I("s_add_u32 s%d, s%d, s%d" % (sT0, sT0, sWv))
    I("s_mul_i32 s%d, s%d, 1280" % (sT1, sT0))
    I("v_lshlrev_b32 v%d, 4, v%d" % (vT, vLane))
    I("v_cmp_gt_u32 vcc, 16, v%d" % vLane)
    I("v_mov_b32 v%d, 0x%x" % (vT + 1, BIG))
    I("v_add_u32 v%d, 1024, v%d" % (vXo1, vT))
    I("v_cndmask_b32 v%d, v%d, v%d, vcc" % (vXo1, vT + 1, vXo1))
    I("buffer_load_dwordx4 %s, v%d, s[%d:%d], s%d offen" % (vr(vX, 4), vT, sX, sX + 3, sT1)); vm.issue("x")
    I("buffer_load_dwordx4 %s, v%d, s[%d:%d], s%d offen" % (vr(vX + 4, 4), vXo1, sX, sX + 3, sT1)); vm.issue("x")
    I("s_lshr_b32 s%d, s%d, 4" % (sT1, sT0))
    I("s_mul_i32 s%d, s%d, 20480" % (sT1, sT1))
    I("s_and_b32 s%d, s%d, 15" % (sT2, sT0))
    I("s_lshl_b32 s%d, s%d, 4" % (sT2, sT2))
    I("s_add_u32 s%d, s%d, s%d" % (sT1, sT1, sT2))
    I("s_add_u32 s%d, s%d, 0x%x" % (sT1, sT1, WS_HF))
    I("v_lshlrev_b32 v%d, 8, v%d" % (vHo0, vLane))
    I("v_add_u32 v%d, s%d, v%d" % (vHo0, sT1, vHo0))
    I("v_add_u32 v%d, 16384, v%d" % (vHo1, vHo0))
    I("v_cndmask_b32 v%d, v%d, v%d, vcc" % (vHo1, vT + 1, vHo1))
    I("v_and_b32 v%d, 15, v%d" % (vT, vLane))
    I("v_lshrrev_b32 v%d, 2, v%d" % (vT + 1, vT))
    I("v_sub_u32 v%d, 0, v%d" % (vT + 1, vT + 1))
    I("v_lshrrev_b32 v%d, 4, v%d" % (vU, vLane))
    I("v_xor_b32 v%d, v%d, v%d" % (vT + 1, vT + 1, vU))
    I("v_and_b32 v%d, 3, v%d" % (vT + 1, vT + 1))
    I("v_lshlrev_b32 v%d, 4, v%d" % (vT + 1, vT + 1))
    I("v_lshl_add_u32 v%d, v%d, 6, v%d" % (vT, vT, vT + 1))
    I("s_lshr_b32 s%d, s%d, 1" % (sT0, sWv))
    I("s_and_b32 s%d, s%d, 1" % (sT0, sT0))
    I("s_lshl_b32 s%d, s%d, 13" % (sT0, sT0))
    I("v_add_u32 v%d, s%d, v%d" % (vCa, sT0, vT))
    I("v_add_u32 v%d, 65536, v%d" % (vCa + 1, vCa))
    I("v_lshrrev_b32 v%d, 2, v%d" % (vT, vLane))
    I("v_and_b32 v%d, 3, v%d" % (vT, vT))
    I("v_lshrrev_b32 v%d, 4, v%d" % (vU, vLane))
    I("v_and_b32 v%d, 1, v%d" % (vU + 1, vU))
    I("v_lshl_add_u32 v%d, v%d, 2, v%d" % (vU + 1, vU + 1, vT))
    I("s_and_b32 s%d, s%d, 1" % (sT0, sWv))
    I("s_lshl_b32 s%d, s%d, 2" % (sT0, sT0))
    I("v_xor_b32 v%d, s%d, v%d" % (vU + 1, sT0, vU + 1))
    I("v_lshlrev_b32 v%d, 5, v%d" % (vU + 1, vU + 1))
    I("v_lshl_add_u32 v%d, v%d, 8, v%d" % (vU + 1, vT, vU + 1))
    I("v_lshl_add_u32 v%d, v%d, 11, v%d" % (vU + 1, vU, vU + 1))
    I("v_and_b32 v%d, 3, v%d" % (vT, vLane))
    I("v_lshl_add_u32 v%d, v%d, 3, v%d" % (vU + 1, vT, vU + 1))
    I("s_lshr_b32 s%d, s%d, 2" % (sT0, sWv))
    I("s_lshl_b32 s%d, s%d, 13" % (sT0, sT0))
    I("s_add_u32 s%d, s%d, 16384" % (sT0, sT0))
    I("v_add_u32 v%d, s%d, v%d" % (vWa, sT0, vU + 1))
    I("v_add_u32 v%d, 65536, v%d" % (vWa + 1, vWa))
    for db in range(1, 4):
        I("v_xor_b32 v%d, %d, v%d" % (vWa + 2 * db, 32 * db, vWa))
        I("v_xor_b32 v%d, %d, v%d" % (vWa + 2 * db + 1, 32 * db, vWa + 1))
    I("s_lshl_b32 s%d, s%d, 6" % (sT0, sH))
    I("s_lshl_b32 s%d, s%d, 3" % (sT1, sJ))
    I("s_add_u32 s%d, s%d, s%d" % (sT0, sT0, sT1))
    I("s_and_b32 s%d, s%d, 2" % (sT1, sWv))
    I("s_lshl_b32 s%d, s%d, 1" % (sT1, sT1))
    I("s_add_u32 s%d, s%d, s%d" % (sT0, sT0, sT1))
    I("s_lshl_b32 s%d, s%d, 14" % (sT0, sT0))
    I("s_add_u32 s%d, s%d, 0x%x" % (sT0, sT0, WS_KV))
    I("s_and_b32 s%d, s%d, 1" % (sT1, sWv))
    I("s_lshl_b32 s%d, s%d, 11" % (sT2, sT1))
    I("s_lshl_b32 s%d, s%d, 12" % (sT3, sT1))
    I("s_add_u32 s%d, s%d, 8192" % (sT3, sT3))
    I("s_cmp_lt_u32 s%d, 4" % sWv)
    I("s_cselect_b32 s%d, s%d, s%d" % (sT2, sT2, sT3))
    I("s_add_u32 s%d, s%d, s%d" % (sT0, sT0, sT2))
    I("v_lshlrev_b32 v%d, 4, v%d" % (vSt, vLane))
    I("v_add_u32 v%d, s%d, v%d" % (vSt, sT0, vSt))

    def mod_partial():
        vm.wait("mod")
        for i in range(3):
            c = vM + 12 + i
            I("v_lshlrev_b32 v%d, 16, v%d" % (c, c))
            I("v_mul_f32 v%d, 0x%x, v%d" % (vT, f32bits(-LOG2E), c))
            I("v_exp_f32 v%d, v%d" % (vT, vT))
            I("v_add_f32 v%d, 1.0, v%d" % (vT, vT))
            I("v_rcp_f32 v%d, v%d" % (vT, vT))
            I("v_mul_f32 v%d, v%d, v%d" % (c, c, vT))
            I("v_cvt_pk_bf16_f32 v%d, v%d, v%d" % (c, c, c))
            I("v_lshlrev_b32 v%d, 16, v%d" % (c, c))
            for d in range(4):
                w = vM + 4 * i + d
                I("v_lshlrev_b32 v%d, 16, v%d" % (vT, w))
                I("v_and_b32 v%d, 0xffff0000, v%d" % (vT + 1, w))
                op = "v_mul_f32" if i == 0 else "v_fmac_f32"
                I("%s v%d, v%d, v%d" % (op, vA + 2 * d, vT, c))
                I("%s v%d, v%d, v%d" % (op, vA + 2 * d + 1, vT + 1, c))
        for sh in (2, 4, 8):
            for e in range(8):
                I("v_add_f32_dpp v%d, v%d, v%d row_ror:%d row_mask:0xf bank_mask:0xf" % (vA + e, vA + e, vA + e, sh))
        I("v_lshrrev_b32 v%d, 4, v%d" % (vT, vTid))
        I("v_lshlrev_b32 v%d, 6, v%d" % (vT, vT))
        I("v_and_b32 v%d, 1, v%d" % (vT + 1, vTid))
        I("v_lshl_add_u32 v%d, v%d, 5, v%d" % (vT, vT + 1, vT))
        I("v_add_u32 v%d, %d, v%d" % (vT, LDS_RED, vT))
        I("v_and_b32 v%d, 14, v%d" % (vT + 1, vTid))
        I("v_cmp_eq_u32 vcc, 0, v%d" % (vT + 1))
        I("s_and_saveexec_b64 s[%d:%d], vcc" % (sEx, sEx + 1))
        I("ds_write_b128 v%d, %s" % (vT, vr(vA, 4)))
        I("ds_write_b128 v%d, %s offset:16" % (vT, vr(vA + 4, 4)))
        I("s_mov_b64 exec, s[%d:%d]" % (sEx, sEx + 1))

    def mod_final():
        L = k.newlabel("modskip")
        I("s_cmp_lg_u32 s%d, 0" % sWv)
        I("s_cbranch_scc1 %s" % L)
        I("v_and_b32 v%d, 15, v%d" % (vT, vLane))
        I("v_lshrrev_b32 v%d, 4, v%d" % (vT + 1, vLane))
        I("v_lshlrev_b32 v%d, 9, v%d" % (vT + 1, vT + 1))
        I("v_lshl_add_u32 v%d, v%d, 2, v%d" % (vT + 1, vT, vT + 1))
        I("v_add_u32 v%d, %d, v%d" % (vT + 1, LDS_RED, vT + 1))
        for e in range(8):
            I("ds_read_b32 v%d, v%d offset:%d" % (vA + e, vT + 1, 64 * e))
        I("s_waitcnt lgkmcnt(0)")
        for e in range(1, 8):
            I("v_add_f32 v%d, v%d, v%d" % (vA, vA, vA + e))
        I("v_mov_b32 v%d, v%d" % (vA + 1, vA))
        I("v_permlane16_swap_b32 v%d, v%d" % (vA, vA + 1))
        I("v_add_f32 v%d, v%d, v%d" % (vA, vA, vA + 1))
        I("v_mov_b32 v%d, v%d" % (vA + 1, vA))
        I("v_permlane32_swap_b32 v%d, v%d" % (vA, vA + 1))
        I("v_add_f32 v%d, v%d, v%d" % (vA, vA, vA + 1))
        I("v_cvt_pk_bf16_f32 v%d, v%d, v%d" % (vA, vA, vA))
        I("v_lshlrev_b32 v%d, 16, v%d" % (vA, vA))
        I("s_mul_i32 s%d, s%d, 1639" % (sSeg, sCG))
        I("s_lshr_b32 s%d, s%d, 16" % (sSeg, sSeg))
        I("s_cmp_eq_u32 s%d, 1" % sSeg)
        I("s_cselect_b32 s%d, 1.0, 0" % sT0)
        I("s_cmp_eq_u32 s%d, 4" % sSeg)
        I("s_cselect_b32 s%d, 1.0, s%d" % (sT0, sT0))
        I("v_add_f32 v%d, s%d, v%d" % (vA, sT0, vA))
        I("v_cvt_pk_bf16_f32 v%d, v%d, v%d" % (vA + 1, vA, vA))
        I("v_lshlrev_b32 v%d, 16, v%d" % (vA, vA + 1))
        I("s_lshl_b32 s%d, s%d, 6" % (sT0, sCG))
        I("s_add_u32 s%d, s%d, s%d" % (sT0, sT0, sBig))
        I("v_lshlrev_b32 v%d, 2, v%d" % (vT + 1, vLane))
        I("v_add_u32 v%d, s%d, v%d" % (vT + 1, sT0, vT + 1))
        I("s_mul_i32 s%d, s%d, 40" % (sT1, sSeg))
        I("s_sub_u32 s%d, s%d, s%d" % (sT1, sCG, sT1))
        I("s_lshr_b32 s%d, s%d, 1" % (sT2, sT1))
        I("s_lshl_b32 s%d, s%d, 10" % (sT2, sT2))
        I("s_and_b32 s%d, s%d, 1" % (sT1, sT1))
        I("s_lshl_b32 s%d, s%d, 3" % (sT1, sT1))
        I("s_add_u32 s%d, s%d, s%d" % (sT2, sT2, sT1))
        I("s_add_u32 s%d, s%d, 0x%x" % (sT2, sT2, WS_SPEC))
        I("s_add_u32 s%d, s%d, s%d" % (sT2, sT2, sBig))
        I("v_lshrrev_b32 v%d, 2, v%d" % (vA + 2, vLane))
        I("v_lshlrev_b32 v%d, 8, v%d" % (vA + 2, vA + 2))
        I("v_and_b32 v%d, 3, v%d" % (vA + 3, vLane))
        I("v_lshl_add_u32 v%d, v%d, 1, v%d" % (vA + 2, vA + 3, vA + 2))
        I("v_add_u32 v%d, s%d, v%d" % (vA + 2, sT2, vA + 2))
        I("s_mov_b32 s%d, 0x%x" % (sT1, BIG))
        I("s_cmp_eq_u32 s%d, 4" % sSeg)
        I("s_cselect_b32 s%d, 0, s%d" % (sT0, sT1))
        I("s_cmp_eq_u32 s%d, 3" % sSeg)
        I("s_cselect_b32 s%d, 16, s%d" % (sT0, sT0))
        I("s_cselect_b32 s%d, 32, s%d" % (sT1, sT1))
        I("v_mov_b32 v%d, 0x3f80" % (vA + 3))
        I("v_add_u32 v%d, s%d, v%d" % (vA + 4, sT0, vA + 2))
        I("v_add_u32 v%d, s%d, v%d" % (vA + 5, sT1, vA + 2))
        I("v_cmp_gt_u32 vcc, 16, v%d" % vLane)
        I("s_and_saveexec_b64 s[%d:%d], vcc" % (sEx, sEx + 1))
        I("buffer_store_dword v%d, v%d, s[%d:%d], 0 offen sc1" % (vA, vT + 1, sWS, sWS + 3))
        I("buffer_store_short v%d, v%d, s[%d:%d], 0 offen" % (vA + 1, vA + 4, sWS, sWS + 3))
        I("buffer_store_short v%d, v%d, s[%d:%d], 0 offen" % (vA + 3, vA + 5, sWS, sWS + 3))
        I("s_mov_b64 exec, s[%d:%d]" % (sEx, sEx + 1))
        k.label(L)

    def mod_signal():
        L = k.newlabel("sigskip")
        I("s_cmp_lg_u32 s%d, 0" % sWv)
        I("s_cbranch_scc1 %s" % L)
        I("s_add_u32 s%d, s%d, s%d" % (sT0, sCG, sBig))
        I("s_cmp_ge_u32 s%d, 80" % sT0)
        I("s_cbranch_scc1 %s" % L)
        I("v_mov_b32 v%d, 1" % vT)
        I("v_mov_b32 v%d, 0" % (vT + 1))
        I("s_mov_b64 exec, 1")
        I("buffer_atomic_add v%d, v%d, s[%d:%d], 0 offen sc1" % (vT, vT + 1, sDBG, sDBG + 3))
        I("s_mov_b64 exec, -1")
        k.label(L)

    def x_stats():
        vm.wait("x")
        t0, t1, acc = vT, vT + 1, vU
        for d in range(8):
            I("v_lshlrev_b32 v%d, 16, v%d" % (t0, vX + d))
            I("v_and_b32 v%d, 0xffff0000, v%d" % (t1, vX + d))
            if d == 0:
                I("v_add_f32 v%d, v%d, v%d" % (acc, t0, t1))
            else:
                I("v_add_f32 v%d, v%d, v%d" % (acc, acc, t0))
                I("v_add_f32 v%d, v%d, v%d" % (acc, acc, t1))
        I("v_mul_f32 v%d, 0x%x, v%d" % (acc, f32bits(1.0 / 640), acc))
        wave_sum_to_sgpr(k, acc, sMean)
        acc2 = vU + 1
        for d in range(8):
            a = acc if d < 4 else acc2
            I("v_lshlrev_b32 v%d, 16, v%d" % (t0, vX + d))
            I("v_and_b32 v%d, 0xffff0000, v%d" % (t1, vX + d))
            I("v_subrev_f32 v%d, s%d, v%d" % (t0, sMean, t0))
            I("v_subrev_f32 v%d, s%d, v%d" % (t1, sMean, t1))
            if d % 4 == 0:
                I("v_mul_f32 v%d, v%d, v%d" % (a, t0, t0))
            else:
                I("v_fmac_f32 v%d, v%d, v%d" % (a, t0, t0))
            I("v_fmac_f32 v%d, v%d, v%d" % (a, t1, t1))
        I("v_cmp_gt_u32 vcc, 16, v%d" % vLane)
        I("v_cndmask_b32 v%d, 0, v%d, vcc" % (acc2, acc2))
        I("v_add_f32 v%d, v%d, v%d" % (acc, acc, acc2))
        I("v_mul_f32 v%d, 0x%x, v%d" % (acc, f32bits(1.0 / 640), acc))
        wave_sum_to_sgpr(k, acc, sRstd)
        I("v_mov_b32 v%d, s%d" % (acc, sRstd))
        I("v_add_f32 v%d, 0x%x, v%d" % (acc, f32bits(1e-5), acc))
        I("v_rsq_f32 v%d, v%d" % (acc, acc))
        I("v_mul_f32 v%d, 0x%x, v%d" % (acc, f32bits(QSCALE), acc))
        I("v_readfirstlane_b32 s%d, v%d" % (sRstd, acc))

    def poll_issue():
        I("v_mov_b32 v%d, 0" % vT)
        I("buffer_load_dword v%d, v%d, s[%d:%d], 0 offen sc1" % (vPoll, vT, sDBG, sDBG + 3)); vm.issue("poll")

    def poll_check():
        vm.wait("poll")
        Lok, Lsp = k.newlabel("pok"), k.newlabel("spin")
        I("s_mov_b32 s%d, 0x40000" % sT3)
        k.label(Lsp)
        I("v_readfirstlane_b32 s%d, v%d" % (sT0, vPoll))
        I("s_cmp_ge_u32 s%d, 80" % sT0)
        I("s_cbranch_scc1 %s" % Lok)
        I("s_sleep 8")
        I("v_mov_b32 v%d, 0" % vT)
        I("buffer_load_dword v%d, v%d, s[%d:%d], 0 offen sc1" % (vPoll, vT, sDBG, sDBG + 3))
        I("s_waitcnt vmcnt(0)")
        I("s_sub_u32 s%d, s%d, 1" % (sT3, sT3))
        I("s_cmp_lg_u32 s%d, 0" % sT3)
        I("s_cbranch_scc1 %s" % Lsp)
        k.label(Lok)
        I("v_lshlrev_b32 v%d, 5, v%d" % (vT, vLane))
        I("v_lshlrev_b32 v%d, 1, v%d" % (vT + 1, vXo1))
        for (dst, base) in ((vSA, 0), (vG, 2560)):
            for c, va in ((0, vT), (1, vT + 1)):
                for hh in range(2):
                    I("buffer_load_dwordx4 %s, v%d, s[%d:%d], 0 offen offset:%d sc1" % (vr(dst + 8 * c + 4 * hh, 4), va, sWS, sWS + 3, base + 16 * hh)); vm.issue("sag")

    def h_compute():
        vm.wait("sag")
        t0, t1 = vT, vT + 1
        I("s_mov_b32 s%d, 0x%x" % (sT0, f32bits(QSCALE)))
        for d in range(8):
            I("v_lshlrev_b32 v%d, 16, v%d" % (t0, vX + d))
            I("v_and_b32 v%d, 0xffff0000, v%d" % (t1, vX + d))
            I("v_subrev_f32 v%d, s%d, v%d" % (t0, sMean, t0))
            I("v_subrev_f32 v%d, s%d, v%d" % (t1, sMean, t1))
            I("v_mul_f32 v%d, s%d, v%d" % (t0, sRstd, t0))
            I("v_mul_f32 v%d, s%d, v%d" % (t1, sRstd, t1))
            I("v_mul_f32 v%d, s%d, v%d" % (vSA + 2 * d, sT0, vSA + 2 * d))
            I("v_mul_f32 v%d, s%d, v%d" % (vSA + 2 * d + 1, sT0, vSA + 2 * d + 1))
            I("v_fma_f32 v%d, v%d, v%d, v%d" % (t0, t0, vG + 2 * d, vSA + 2 * d))
            I("v_fma_f32 v%d, v%d, v%d, v%d" % (t1, t1, vG + 2 * d + 1, vSA + 2 * d + 1))
            I("v_cvt_pk_bf16_f32 v%d, v%d, v%d" % (vX + d, t0, t1))
        I("buffer_store_dwordx4 %s, v%d, s[%d:%d], 0 offen" % (vr(vX, 4), vHo0, sWS, sWS + 3)); vm.issue("hst")
        I("buffer_store_dwordx4 %s, v%d, s[%d:%d], 0 offen" % (vr(vX + 4, 4), vHo1, sWS, sWS + 3)); vm.issue("hst")

    def rdC(kt, kvb):
        stg = (kt % 4) * 32768; hi = 1 if stg >= 65536 else 0; so = stg - 65536 * hi
        return "ds_read_b128 %s, v%d offset:%d" % (vr(vCf + 4 * kvb, 4), vCa + hi, so + kvb * 1024)
    def rdW(kt, db, hf):
        stg = (kt % 4) * 32768; hi = 1 if stg >= 65536 else 0; so = stg - 65536 * hi
        return "ds_read_b64_tr_b16 %s, v%d offset:%d" % (vr(vWf + 16 * (kt & 1) + 4 * db + 2 * hf, 2), vWa + 2 * db + hi, so + 1024 * hf)
    def mfma(kt, kvb, db, isK):
        acc = vr(vAcc + 16 * kvb + 4 * db, 4)
        cf = vr(vCf + 4 * kvb, 4); wf = vr(vWf + 16 * (kt & 1) + 4 * db, 4)
        a, b = (wf, cf) if isK else (cf, wf)
        return "v_mfma_f32_16x16x32_bf16 %s, %s, %s, %s" % (acc, a, b, "0" if kt == 0 else acc)

    def mainloop(isK):
        saved = list(vm.q); sn = st.n
        vm.wait("kt0")
        I("s_barrier")
        st.stamp()
        for db in range(4):
            for hf in range(2): I(rdW(0, db, hf))
        for kvb in range(8): I(rdC(0, kvb))
        for kt in range(16):
            nxt = kt + 1 < 16
            I("s_waitcnt lgkmcnt(7)")
            for db in range(4): I(mfma(kt, 0, db, isK))
            I("s_waitcnt lgkmcnt(0)")
            for db in range(2): I(mfma(kt, 1, db, isK))
            if nxt:
                vm.wait("kt%d" % (kt + 1))
                I("s_barrier")
                if kt in (0, 7, 14): st.stamp()
            for db in range(2, 4): I(mfma(kt, 1, db, isK))
            if kt + 4 < 16: dma(kt + 4)
            if kt == 2: mod_partial()
            if kt == 3 and isK: mod_final()
            if kt == 7 and isK: mod_signal()
            if kt == 4: x_stats()
            if kt == 12: poll_issue()
            if kt == 15: poll_check()
            rd = []
            if nxt:
                rd = [rdW(kt + 1, db, hf) for db in range(4) for hf in range(2)]
                rd += [rdC(kt + 1, 0), rdC(kt + 1, 1)]
            ri = 0
            for kvb in range(2, 8):
                for db in range(4):
                    I(mfma(kt, kvb, db, isK))
                    if ri < len(rd): I(rd[ri]); ri += 1
                if nxt: rd.append(rdC(kt + 1, kvb))
            while ri < len(rd): I(rd[ri]); ri += 1
        st.stamp()
        n = 0
        for blk in range(4):
            for a in range(2):
                for b in range(2 if isK else 4) if False else range(2):
                    pass
        if isK:
            for kvb in range(8):
                for dp in range(2):
                    dst = vCf + 4 * (n % 8); n += 1
                    a = vAcc + 16 * kvb + 8 * dp
                    for q in range(4):
                        I("v_cvt_pk_bf16_f32 v%d, v%d, v%d" % (dst + q, a + 2 * q, a + 2 * q + 1))
                    I("s_mov_b32 s%d, %d" % (sT0, (kvb >> 1) * 16384 + (kvb & 1) * 4096 + dp * 1024))
                    I("buffer_store_dwordx4 %s, v%d, s[%d:%d], s%d offen" % (vr(dst, 4), vSt, sWS, sWS + 3, sT0)); vm.issue("st")
        else:
            for p in range(4):
                for db in range(4):
                    dst = vCf + 4 * (n % 8); n += 1
                    for hh in range(2):
                        a = vAcc + 16 * (2 * p + hh) + 4 * db
                        for q in range(2):
                            I("v_cvt_pk_bf16_f32 v%d, v%d, v%d" % (dst + 2 * hh + q, a + 2 * q, a + 2 * q + 1))
                    I("s_mov_b32 s%d, %d" % (sT0, p * 16384 + db * 1024))
                    I("buffer_store_dwordx4 %s, v%d, s[%d:%d], s%d offen" % (vr(dst, 4), vSt, sWS, sWS + 3, sT0)); vm.issue("st")
        st.stamp()
        h_compute()
        st.dump(sWS, sWv, vT, sT0, 8)
        I("s_endpgm")
        vm.q = saved; st.n = sn

    LV = "k1_vpath"
    I("s_cmp_ge_u32 s%d, 4" % sWv)
    I("s_cbranch_scc1 %s" % LV)
    mainloop(True)
    k.label(LV)
    mainloop(False)
    k.label(L_end)
    I("s_endpgm")
    return k
```

```python
from fw import *
from layout import *
from k1 import srd, BIG

THR = float(1 << 20)
PACK = os.environ.get("PACK", "1") == "1"

def gen_k2():
    LDS_X = 131072
    k = Kern("k2_kernel", 256, 512, 163840)
    I = k.I
    vm = Cnt(k, "vmcnt", 63)
    X = os.environ.get("X", "")
    sWQ, sWS, sPK = 8, 12, 4
    sH, sA, sWv, sHf, sQs = 16, 17, 18, 19, 20
    sT0, sT1, sT2, sT3 = 21, 22, 23, 24
    sKVo, sRem, sM0b, sSlotW, sSlotR = 25, 26, 28, 29, 30
    sN, sQb, sThr, sSo = 31, 32, 33, 35
    sPtr = 36
    sM = 50
    sPs, sPd, sPss, sPds, sPn, sPv, sPl, sPi, sPsp = 58, 59, 60, 61, 62, 63, 64, 65, 66
    vO, vS, vP, vNM, vL, vQ, vF, vFV, vT, vOne = 0, (64, 80), (96, 104), 112, (120, 128), 136, 168, 200, 232, 240
    vNeg, vL16, vRd, vCtx = 244, 245, 246, 247
    vWa = 200
    vDW, vDW2, vH0, vH1 = 208, 209, 210, 211
    vX0, vX1, vX2, vX3 = 248, 249, 250, 251
    vLane = vT + 7
    vDum = 252
    vH = 64; HD = 13
    L_end = "k2_end"
    fixups = []
    I("s_cmp_ge_u32 s2, 256")
    I("s_cbranch_scc1 %s" % L_end)
    st = Stamps(k, 70, 14)
    st.stamp(True); st.stamp()
    I("s_load_dwordx2 s[%d:%d], s[0:1], %d" % (sPtr, sPtr + 1, KA_WQ))
    I("s_load_dwordx2 s[%d:%d], s[0:1], %d" % (sPtr + 2, sPtr + 3, KA_WS))
    I("s_load_dwordx2 s[%d:%d], s[0:1], %d" % (sPtr + 4, sPtr + 5, KA_WO))
    I("s_load_dwordx2 s[%d:%d], s[0:1], %d" % (sPtr + 6, sPtr + 7, KA_W1))
    I("s_load_dwordx2 s[%d:%d], s[0:1], %d" % (sPtr + 8, sPtr + 9, KA_W2))
    I("s_load_dwordx2 s[%d:%d], s[0:1], %d" % (sPtr + 10, sPtr + 11, KA_W3))
    I("s_load_dwordx2 s[%d:%d], s[0:1], %d" % (sPtr + 12, sPtr + 13, KA_W4))
    I("v_lshrrev_b32 v%d, 6, v0" % vX0)
    I("v_and_b32 v%d, 63, v0" % vLane)
    I("v_readfirstlane_b32 s%d, v%d" % (sWv, vX0))
    I("v_lshlrev_b32 v%d, 4, v%d" % (vL16, vLane))
    I("s_and_b32 s%d, s2, 7" % sT0)
    I("s_lshr_b32 s%d, s2, 3" % sT1)
    I("s_and_b32 s%d, s%d, 3" % (sH, sT1))
    I("s_lshl_b32 s%d, s%d, 2" % (sT2, sT0))
    I("s_add_u32 s%d, s%d, s%d" % (sH, sH, sT2))
    I("s_lshr_b32 s%d, s2, 5" % sA)
    I("s_lshr_b32 s%d, s%d, 2" % (sHf, sWv))
    I("s_and_b32 s%d, s%d, 3" % (sQs, sWv))
    I("v_lshrrev_b32 v%d, 4, v%d" % (vX0, vLane))
    I("v_lshlrev_b32 v%d, 1, v%d" % (vX2, vX0))
    I("v_xor_b32 v%d, v%d, v%d" % (vX2, vX2, vLane))
    I("v_and_b32 v%d, 15, v%d" % (vX2, vX2))
    I("v_lshlrev_b32 v%d, 4, v%d" % (vX2, vX2))
    I("v_lshl_add_u32 v%d, v%d, 13, v%d" % (vX2, vX0, vX2))
    I("s_lshl_b32 s%d, s%d, 17" % (sT0, sWv))
    I("s_lshl_b32 s%d, s%d, 8" % (sT1, sH))
    I("s_add_u32 s%d, s%d, s%d" % (sT0, sT0, sT1))
    I("v_add_u32 v%d, s%d, v%d" % (vDW, sT0, vX2))
    I("v_xor_b32 v%d, 128, v%d" % (vDW2, vDW))
    I("s_lshl_b32 s%d, s%d, 12" % (sM0b, sWv))
    I("s_sub_u32 s%d, 15, s%d" % (sT0, sA))
    I("s_lshl_b32 s%d, s%d, 1" % (sRem, sT0))
    I("s_add_u32 s%d, s%d, 2" % (sRem, sRem))
    I("s_cmp_eq_u32 s%d, 0" % sHf)
    I("s_cselect_b32 s%d, s%d, s%d" % (sQb, sT0, sA))
    I("s_lshl_b32 s%d, s%d, 2" % (sN, sQb))
    I("s_add_u32 s%d, s%d, s%d" % (sN, sN, sQs))
    I("s_mul_i32 s%d, s%d, 40960" % (sT0, sN))
    I("s_add_u32 s%d, s%d, 0x%x" % (sT0, sT0, WS_HF))
    I("v_add_u32 v%d, s%d, v%d" % (vH0, sT0, vL16))
    I("v_add_u32 v%d, 20480, v%d" % (vH1, vH0))
    I("s_lshl_b32 s%d, s%d, 20" % (sKVo, sH))
    I("s_add_u32 s%d, s%d, 0x%x" % (sKVo, sKVo, WS_KV))
    I("s_waitcnt lgkmcnt(0)")
    srd(k, sWQ, sPtr, sPtr + 1, 640 * 4096 * 2)
    srd(k, sWS, sPtr + 2, sPtr + 3, WS_SIZE)

    def dmaW(u):
        I("s_add_u32 m0, s%d, %d" % (sM0b, (u % 4) * 32768))
        for i in range(4):
            I("s_mov_b32 s%d, %d" % (sSo, u * 128 * 8192 + i * (32768 - 1024)))
            I("buffer_load_dwordx4 v%d, s[%d:%d], s%d offen offset:%d lds" % (vDW if i < 2 else vDW2, sWQ, sWQ + 3, sSo, 1024 * i)); vm.issue("u%d" % u)
    def ldh(ks):
        b = vH + 8 * (ks % HD)
        I("s_mov_b32 s%d, %d" % (sSo, ks * 1024))
        I("buffer_load_dwordx4 %s, v%d, s[%d:%d], s%d offen" % (vr(b, 4), vH0, sWS, sWS + 3, sSo)); vm.issue("h%d" % ks)
        I("buffer_load_dwordx4 %s, v%d, s[%d:%d], s%d offen" % (vr(b + 4, 4), vH1, sWS, sWS + 3, sSo)); vm.issue("h%d" % ks)
    dmaW(0)
    for ks in range(4): ldh(ks)
    I("v_lshrrev_b32 v%d, 2, v%d" % (vX0, vLane))
    I("v_and_b32 v%d, 3, v%d" % (vX0, vX0))
    I("v_lshrrev_b32 v%d, 4, v%d" % (vX2, vLane))
    I("v_and_b32 v%d, 1, v%d" % (vWa, vX2))
    I("v_lshl_add_u32 v%d, v%d, 2, v%d" % (vWa, vWa, vX0))
    I("v_lshlrev_b32 v%d, 5, v%d" % (vWa, vWa))
    I("v_lshl_add_u32 v%d, v%d, 8, v%d" % (vWa, vX0, vWa))
    I("v_lshl_add_u32 v%d, v%d, 11, v%d" % (vWa, vX2, vWa))
    I("v_and_b32 v%d, 3, v%d" % (vX0, vLane))
    I("v_lshl_add_u32 v%d, v%d, 3, v%d" % (vWa, vX0, vWa))
    for db in range(1, 8):
        I("v_xor_b32 v%d, %d, v%d" % (vWa + db, 32 * db, vWa))
    I("v_mov_b32 v%d, 0x%x" % (vNeg, f32bits(-1e30)))
    I("s_mov_b32 s%d, 0x%x" % (sThr, f32bits(THR)))
    for i in range(4): I("v_mov_b32 v%d, 0x3f803f80" % (vOne + i))
    I("v_and_b32 v%d, 15, v%d" % (vX0, vLane))
    I("v_lshlrev_b32 v%d, 2, v%d" % (vX2, vX2))
    I("v_sub_u32 v%d, v%d, v%d" % (vX0, vX0, vX2))
    for r in range(4):
        I("v_cmp_le_i32 s[%d:%d], %d, v%d" % (sM + 2 * r, sM + 2 * r + 1, r, vX0))
    I("s_lshl_b32 s%d, s%d, 18" % (sT0, sN))
    I("s_lshl_b32 s%d, s%d, 12" % (sT1, sH))
    I("s_add_u32 s%d, s%d, s%d" % (sT0, sT0, sT1))
    I("s_add_u32 s%d, s%d, 0x%x" % (sT0, sT0, WS_CTX))
    I("v_add_u32 v%d, s%d, v%d" % (vCtx, sT0, vL16))
    dmaW(1)
    for ks in range(4, 8): ldh(ks)
    I("s_mul_i32 s%d, s%d, 3072" % (sT0, sWv))
    I("s_add_u32 s%d, s%d, s%d" % (sSo, sT0, sKVo))
    I("s_add_u32 m0, s%d, %d" % (sT0, LDS_X))
    for i in range(3):
        I("buffer_load_dwordx4 v%d, s[%d:%d], s%d offen offset:%d lds" % (vL16, sWS, sWS + 3, sSo, 1024 * i)); vm.issue("pre")
    I("s_lshl_b32 s%d, s%d, 13" % (sSlotW, sQs))
    I("s_add_u32 s%d, s%d, s%d" % (sKVo, sKVo, sSlotW))
    I("s_add_u32 s%d, s%d, 24576" % (sKVo, sKVo))
    I("s_add_u32 s%d, s%d, 32768" % (sSlotW, sSlotW))
    I("s_mov_b32 s%d, 32768" % sSlotR)
    st.stamp()
    def dma_kv_body():
        if "d" in X: return
        I("s_mov_b32 m0, s%d" % sSlotW)
        I("s_add_u32 s%d, s%d, 4096" % (sSo, sKVo))
        for i in range(4):
            I("buffer_load_dwordx4 v%d, s[%d:%d], s%d offen offset:%d lds" % (vL16, sWS, sWS + 3, sKVo, 1024 * i))
        I("s_add_u32 m0, s%d, 4096" % sSlotW)
        I("s_add_u32 s%d, s%d, 32768" % (sKVo, sKVo))
        for i in range(4):
            I("buffer_load_dwordx4 v%d, s[%d:%d], s%d offen offset:%d lds" % (vL16, sWS, sWS + 3, sSo, 1024 * i))
        I("s_add_u32 s%d, s%d, 32768" % (sSlotW, sSlotW))
        I("s_and_b32 s%d, s%d, 0x1ffff" % (sSlotW, sSlotW))
    def dma_kv():
        L = k.newlabel("nodma")
        I("s_cmp_eq_u32 s%d, 0" % sHf)
        I("s_cbranch_scc1 %s" % L)
        dma_kv_body()
        k.label(L)

    def rdW(ks, db, hf):
        u = ks // 4; off = (u % 4) * 32768 + (ks % 4) * 8192 + 1024 * hf
        return "ds_read_b64_tr_b16 %s, v%d offset:%d" % (vr(vF + 4 * db + 2 * hf, 2), vWa + db, off % 65536)
    def shiftW(delta):
        for db in range(8):
            I("v_add_u32 v%d, %d, v%d" % (vWa + db, delta & 0xffffffff, vWa + db))
    vm.wait("u0")
    I("s_barrier")
    st.stamp()
    for db in range(8):
        I(rdW(0, db, 0)); I(rdW(0, db, 1))
    nexth = 8
    for ks in range(20):
        u = ks // 4
        newu = (ks + 1) % 4 == 0 and ks + 1 < 20
        vm.wait("h%d" % ks)
        hb = vH + 8 * (ks % HD)
        def mf(db, qs):
            acc = vr(vO + 8 * db + 4 * qs, 4)
            return "v_mfma_f32_16x16x32_bf16 %s, %s, %s, %s" % (acc, vr(vF + 4 * db, 4), vr(hb + 4 * qs, 4), "0" if ks == 0 else acc)
        pend = []
        for db in range(8):
            if newu:
                if db == 0: I("s_waitcnt lgkmcnt(12)")
                if db == 2: I("s_waitcnt lgkmcnt(0)")
            elif ks == 19:
                if db % 2 == 0: I("s_waitcnt lgkmcnt(%d)" % (12 - 2 * db))
            else:
                if db % 2 == 0: I("s_waitcnt lgkmcnt(12)")
            I(mf(db, 0)); I(mf(db, 1))
            if ks + 1 < 20:
                pend += [rdW(ks + 1, db, 0), rdW(ks + 1, db, 1)]
            if newu and db == 2:
                vm.wait("u%d" % (u + 1))
                I("s_barrier")
                if (u + 1) in (2, 4): shiftW(65536 if u + 1 == 2 else -65536)
            if newu and db == 5:
                if u == 0: dmaW(4)
                else: dma_kv()
            if not (newu and db < 2):
                n = 4 if newu else 2
                for x in pend[:n]: I(x)
                pend = pend[n:]
            if db == 3 and ks == 0: dmaW(2)
            if db == 3 and ks == 1: dmaW(3)
            if db in (1, 6) and nexth < 20 and nexth <= ks + HD - 1 and nexth <= ks + 10:
                ldh(nexth); nexth += 1
        for x in pend: I(x)
    st.stamp()

    def qk_list(S, czero=False):
        o = []
        for kvs in range(2):
            for ks in range(4):
                for qs in range(2):
                    d = vr(S + 8 * qs + 4 * kvs, 4)
                    c = d if ks else ("0" if czero else vr(vNM + 4 * qs, 4))
                    o.append("v_mfma_f32_16x16x32_bf16 %s, %s, %s, %s" % (d, vr(vF + 4 * (4 * kvs + ks), 4), vr(vQ + 16 * qs + 4 * ks, 4), c))
        return o
    def pv_list(P):
        o = []
        for db in range(8):
            for qs in range(2):
                d = vr(vO + 8 * db + 4 * qs, 4)
                o.append("v_mfma_f32_16x16x32_bf16 %s, %s, %s, %s" % (d, vr(vFV + 4 * db, 4), vr(P + 4 * qs, 4), d))
        return o
    def l_list(par):
        return ["v_mfma_f32_16x16x32_bf16 %s, %s, %s, %s" % (vr(vL[par] + 4 * qs, 4), vr(vOne, 4), vr(vP[par] + 4 * qs, 4), vr(vL[1 - par] + 4 * qs, 4)) for qs in range(2)]
    def sm_list(par):
        S, P = vS[par], vP[par]
        ex, cv = [], []
        n = 0
        for kvs in range(2):
            for qs in range(2):
                for j in range(2):
                    s = S + 8 * qs + 4 * kvs + 2 * j
                    t0 = vT + 2 * (n % 4); n += 1
                    ex.append(["v_exp_f32 v%d, v%d" % (t0, s), "v_exp_f32 v%d, v%d" % (t0 + 1, s + 1)])
                    cv.append("v_cvt_pk_bf16_f32 v%d, v%d, v%d" % (P + 4 * qs + 2 * kvs + j, t0, t0 + 1))
        out = list(ex[0])
        for g in range(8):
            if g < 7: out += [ex[g + 1][0], cv[g], ex[g + 1][1]]
            else: out += [cv[g]]
        return out
    NPV = int(os.environ.get('NPV', '16'))
    def mask_list(par):
        S = vS[par]
        a = ["v_cndmask_b32 v%d, v%d, v%d, s[%d:%d]" % (S + r, vNeg, S + r, sM + 2 * r, sM + 2 * r + 1) for r in range(4)]
        b = ["v_mov_b32 v%d, v%d" % (S + 4 + r, vNeg) for r in range(4)]
        b += ["v_cndmask_b32 v%d, v%d, v%d, s[%d:%d]" % (S + 12 + r, vNeg, S + 12 + r, sM + 2 * r, sM + 2 * r + 1) for r in range(4)]
        return a, b
    def rowmax(S, qs, dst, tmp):
        s = S + 8 * qs
        I("v_max3_f32 v%d, v%d, v%d, v%d" % (dst, s, s + 1, s + 2))
        I("v_max3_f32 v%d, v%d, v%d, v%d" % (dst, dst, s + 3, s + 4))
        I("v_max3_f32 v%d, v%d, v%d, v%d" % (dst, dst, s + 5, s + 6))
        I("v_max_f32 v%d, v%d, v%d" % (dst, dst, s + 7))
        for sw in ("v_permlane16_swap_b32", "v_permlane32_swap_b32"):
            I("v_mov_b32 v%d, v%d" % (tmp, dst))
            I("%s v%d, v%d" % (sw, dst, tmp))
            I("v_max_f32 v%d, v%d, v%d" % (dst, dst, tmp))
    def emit_fixup(lab, ret, par, head):
        S, Sn = vS[par], vS[1 - par]
        k.label(lab)
        I("s_nop 15")
        for qs in range(2):
            d, f = vX0, vX1
            rowmax(S, qs, d, vX2)
            I("v_log_f32 v%d, v%d" % (f, vL[1 - par] + 4 * qs))
            I("v_max3_f32 v%d, 0, v%d, v%d" % (d, d, f))
            I("v_sub_f32 v%d, 0, v%d" % (f, d))
            I("v_exp_f32 v%d, v%d" % (f, f))
            for i in range(8):
                I("v_sub_f32 v%d, v%d, v%d" % (S + 8 * qs + i, S + 8 * qs + i, d))
                I("v_sub_f32 v%d, v%d, v%d" % (Sn + 8 * qs + i, Sn + 8 * qs + i, d))
            for i in range(4):
                I("v_sub_f32 v%d, v%d, v%d" % (vNM + 4 * qs + i, vNM + 4 * qs + i, d))
                I("v_mul_f32 v%d, v%d, v%d" % (vL[1 - par] + 4 * qs + i, vL[1 - par] + 4 * qs + i, f))
            for db in range(8):
                for i in range(4):
                    o = vO + 8 * db + 4 * qs + i
                    I("v_mul_f32 v%d, v%d, v%d" % (o, o, f))
        for x in sm_list(par): I(x)
        for x in l_list(par): I(x)
        if head:
            for x in sm_list(1 - par)[:H1]: I(x)
        I("s_nop 7")
        I("s_setpc_b64 s[%d:%d]" % (sT2, sT3)) if False else I("s_branch %s" % ret)
    def spread(n, fill, start, end):
        gaps = [[] for _ in range(n)]
        m = end - start
        for j, x in enumerate(fill):
            gaps[start + (j * m) // len(fill)].append(x)
        return gaps
    def sync_point(role):
        if "w" not in X: I("s_waitcnt vmcnt(16) lgkmcnt(0)" if role else "s_waitcnt lgkmcnt(0)")
        I("s_barrier")
        I("v_add_u32 v%d, s%d, v%d" % (vRd, sSlotR, vL16))
    def sync_salu(role):
        o = ["s_add_u32 s%d, s%d, 32768" % (sSlotR, sSlotR), "s_and_b32 s%d, s%d, 0x1ffff" % (sSlotR, sSlotR)]
        if role: o.append("s_sub_u32 s%d, s%d, 1" % (sRem, sRem))
        return o
    def check_br(par, head):
        if "c" in X: return
        lf, lr = k.newlabel("fix"), k.newlabel("ret")
        I("s_cbranch_vccnz %s" % lf)
        k.label(lr)
        fixups.append((lf, lr, par, head))
    GS = int(os.environ.get("GS", "6"))
    H1, H2 = 4, 17
    def cost(x): return 2 if x.startswith("v_exp") else 1
    def sched(ngaps, streams, cap=2, pre=None):
        gaps = [[] for _ in range(ngaps)]
        pos = [0] * len(streams)
        for g in range(ngaps):
            room = cap - (pre.get(g, 0) if pre else 0)
            last_exp_dst = None
            while True:
                best = None
                for si, stv in enumerate(streams):
                    if pos[si] >= len(stv): continue
                    t, e, d = stv[pos[si]]
                    if e > g: continue
                    forced = d <= g
                    if cost(t) > room and not forced: continue
                    if best is None or d < best[0]: best = (d, si)
                if best is None: break
                si = best[1]; t = streams[si][pos[si]][0]; pos[si] += 1
                gaps[g].append(t); room -= cost(t)
        assert all(pos[i] == len(streams[i]) for i in range(len(streams))), "unscheduled"
        return gaps
    def dl(n, lo, hi):
        return [lo + ((j + 1) * (hi - lo + 1) - 1) // n for j in range(n)]
    def step(par, kind, role):
        rdK = ["ds_read_b128 %s, v%d offset:%d" % (vr(vF + 4 * i, 4), vRd, 8192 + 16384 * par + 1024 * i) for i in range(8)]
        rdV = ["ds_read_b128 %s, v%d offset:%d" % (vr(vFV + 4 * i, 4), vRd, 16384 * par + 1024 * i) for i in range(8)]
        tail = sm_list(par)[H2:]
        cmpl = ["v_max_f32 v%d, v%d, v%d" % (vX3, vL[par], vL[par] + 4), "v_cmp_lt_f32 vcc, s%d, v%d" % (sThr, vX3)]
        if kind == "l":
            for x in tail: I(x)
            for x in l_list(par): I(x)
            if par == 0:
                sync_point(role)
                if role:
                    for x in sync_salu(role): I(x)
                    dma_kv_body()
            for x in cmpl: I(x)
            check_br(par, False)
            I("s_waitcnt lgkmcnt(0)")
            for x in pv_list(vP[par]): I(x)
            I("v_rcp_f32 v%d, v%d" % (vX0, vL[par]))
            I("v_rcp_f32 v%d, v%d" % (vX1, vL[par] + 4))
            return
        qk = qk_list(vS[1 - par])
        mf = qk[:9] + l_list(par) + qk[9:] + pv_list(vP[par])
        qpos = lambda m: m if m < 9 else m + 2
        nx = sm_list(1 - par)
        sA = [(x, 0, d) for x, d in zip(tail, dl(len(tail), 0, 7))]
        head, mid = nx[:H1], nx[H1:H2]
        if kind == "m":
            ma, mb_ = mask_list(1 - par)
            head = ma + head
            mid = mid[:6] + mb_ + mid[6:]
        sB = [(x, 11, d) for x, d in zip(head, dl(len(head), 11, 17))]
        sB += [(x, 18 if j < 6 else 22, d) for j, (x, d) in enumerate(zip(mid, dl(len(mid), 18, 33)))]
        sK = []
        if kind == "n":
            for j in range(8):
                e = qpos(2 * j + 1)
                if par == 0: e = max(e, GS)
                sK.append((rdK[j], e, min(17, max(e + 3, 10 + j))))
        sV = [(rdV[j], 18 + 2 * j + 1, min(33, 18 + 2 * j + 3)) for j in range(8)]
        sC = [(cmpl[0], 15, 15), (cmpl[1], 16, 16)]
        sS = [(x, GS + 1, 17) for x in sync_salu(role)] if par == 0 else []
        pre = {17: 2, 33: 2}
        if par == 0: pre[GS - 1] = 2
        gaps = sched(34, [sA, sB, sK, sV, sC, sS], pre=pre)
        I("s_waitcnt lgkmcnt(8)")
        for g in range(34):
            if par == 0 and g == GS: sync_point(role)
            if g == 18:
                check_br(par, True)
                I("s_waitcnt lgkmcnt(%d)" % (8 if kind == "n" else 0))
            I(mf[g])
            for x in gaps[g]: I(x)
            if g == 22 and par == 0 and role: dma_kv_body()

    I("v_add_u32 v%d, %d, v%d" % (vRd, LDS_X, vL16))
    for i in range(8):
        I("ds_read_b128 %s, v%d offset:%d" % (vr(vF + 4 * i, 4), vRd, 1024 * i))
    for ks in range(4):
        for qs in range(2):
            for hh in range(2):
                a = vO + 8 * (2 * ks + hh) + 4 * qs
                for q in range(2):
                    I("v_cvt_pk_bf16_f32 v%d, v%d, v%d" % (vQ + 16 * qs + 4 * ks + 2 * hh + q, a + 2 * q, a + 2 * q + 1))
    I("s_waitcnt lgkmcnt(0)")
    mf = qk_list(vS[0], True)
    for g in range(16):
        I(mf[g])
        if g % 2 == 1: I("ds_read_b128 %s, v%d offset:%d" % (vr(vF + 4 * (g // 2), 4), vRd, 16384 + 1024 * (g // 2)))
        for i in range(4): I("v_mov_b32 v%d, 0" % (vO + 4 * g + i))
    for i in range(8):
        I("ds_read_b128 %s, v%d offset:%d" % (vr(vFV + 4 * i, 4), vRd, 8192 + 1024 * i))
    for i in range(8): I("v_mov_b32 v%d, 0" % (vL[1] + i))
    Lnm = k.newlabel("nomask0")
    I("s_cmp_lg_u32 s%d, 0" % sN)
    I("s_cbranch_scc1 %s" % Lnm)
    a, b = mask_list(0)
    for x in a + b: I(x)
    k.label(Lnm)
    for qs in range(2):
        rowmax(vS[0], qs, vX0 + qs, vX2)
    for qs in range(2):
        for i in range(8):
            I("v_sub_f32 v%d, v%d, v%d" % (vS[0] + 8 * qs + i, vS[0] + 8 * qs + i, vX0 + qs))
        for i in range(4):
            I("v_sub_f32 v%d, 0, v%d" % (vNM + 4 * qs + i, vX0 + qs))
    for x in sm_list(0)[:H2]: I(x)
    st.stamp()
    def steps(role):
        R = "AB"[1 - role]
        I("s_cmp_lt_u32 s%d, 2" % sN)
        I("s_cbranch_scc1 k2_tailE" + R)
        k.label("k2_loop" + R)
        step(0, "n", role)
        I("s_cmp_lt_u32 s%d, 3" % sN)
        I("s_cbranch_scc1 k2_maskO" + R)
        step(1, "n", role)
        I("s_sub_u32 s%d, s%d, 2" % (sN, sN))
        I("s_cmp_ge_u32 s%d, 2" % sN)
        I("s_cbranch_scc1 k2_loop" + R)
        k.label("k2_tailE" + R)
        I("s_cmp_eq_u32 s%d, 0" % sN)
        I("s_cbranch_scc1 k2_lastE" + R)
        step(0, "m", role)
        step(1, "l", role)
        I("s_branch k2_epi")
        k.label("k2_maskO" + R)
        step(1, "m", role)
        k.label("k2_lastE" + R)
        step(0, "l", role)
    I("s_cmp_eq_u32 s%d, 0" % sHf)
    I("s_cbranch_scc1 k2_roleB")
    I("s_setprio 1")
    steps(1)
    I("s_branch k2_epi")
    k.label("k2_roleB")
    if PACK:
        I("s_lshl_b32 s%d, s2, 2" % sT0)
        I("s_add_u32 s%d, s%d, s%d" % (sT0, sT0, sQs))
        I("v_lshlrev_b32 v%d, 3, v%d" % (vX2, vL16))
        srd(k, sPK, sPtr + 4, sPtr + 5, 4096 * 1280)
        I("s_lshl_b32 s%d, s%d, 13" % (sT1, sT0))
        I("v_add_u32 v%d, s%d, v%d" % (vX3, sT1, vX2))
        I("buffer_load_dword v%d, v%d, s[%d:%d], 0 offen" % (vDum, vX3, sPK, sPK + 3))
        I("s_xor_b32 s%d, s%d, 1023" % (sT0, sT0))
        base = 0
        for n_, (ptr, nbytes) in enumerate(((sPtr + 6, 640 * 1280), (sPtr + 8, 640 * 1280), (sPtr + 10, 640 * 3456), (sPtr + 12, 1728 * 1280))):
            if n_ == 0:
                I("s_mov_b32 s%d, s%d" % (sT1, sT0)); I("s_mov_b32 s%d, s%d" % (sT2, ptr)); I("s_mov_b32 s%d, s%d" % (sT3, ptr + 1)); I("s_mov_b32 s%d, 0x%x" % (sSo, nbytes))
            else:
                I("s_sub_u32 s%d, s%d, %d" % (sPs, sT0, base))
                I("s_cmp_ge_u32 s%d, %d" % (sT0, base))
                I("s_cselect_b32 s%d, s%d, s%d" % (sT1, sPs, sT1))
                I("s_cselect_b32 s%d, s%d, s%d" % (sT2, ptr, sT2))
                I("s_cselect_b32 s%d, s%d, s%d" % (sT3, ptr + 1, sT3))
                I("s_cselect_b32 s%d, 0x%x, s%d" % (sSo, nbytes, sSo))
            base += nbytes // 8192
        I("s_mov_b32 s%d, s%d" % (sWQ, sT2)); I("s_and_b32 s%d, s%d, 0xffff" % (sWQ + 1, sT3)); I("s_mov_b32 s%d, s%d" % (sWQ + 2, sSo))
        I("s_lshl_b32 s%d, s%d, 13" % (sT1, sT1))
        I("v_add_u32 v%d, s%d, v%d" % (vX3, sT1, vX2))
        I("buffer_load_dword v%d, v%d, s[%d:%d], 0 offen" % (vDum + 1, vX3, sWQ, sWQ + 3))
    if "Q" in X: I("s_setprio 1")
    steps(0)
    k.label("k2_epi")
    st.stamp()
    def ld_plain():
        I("s_waitcnt vmcnt(16)")
        I("s_barrier")
        I("s_sub_u32 s%d, s%d, 1" % (sRem, sRem))
        dma_kv_body()
    I("s_cmp_eq_u32 s%d, 0" % sHf)
    I("s_cbranch_scc1 k2_epiB")
    I("s_setprio 0")
    ld_plain()
    I("s_branch k2_epi2")
    k.label("k2_epiB")
    I("s_cmp_ge_u32 s%d, 2" % sQs)
    I("s_cbranch_scc1 k2_epi2")
    I("s_barrier")
    k.label("k2_epi2")
    n = 0
    for qs in range(2):
        for j in range(4):
            dst = vS[0] + 4 * (n % 8); n += 1
            for hh in range(2):
                o = vO + 8 * (2 * j + hh) + 4 * qs
                for i in range(4):
                    I("v_mul_f32 v%d, v%d, v%d" % (o + i, o + i, vX0 + qs))
                for q in range(2):
                    I("v_cvt_pk_bf16_f32 v%d, v%d, v%d" % (dst + 2 * hh + q, o + 2 * q, o + 2 * q + 1))
            if j == 0: I("s_mov_b32 s%d, %d" % (sT0, qs * 131072))
            I("buffer_store_dwordx4 %s, v%d, s[%d:%d], s%d offen offset:%d" % (vr(dst, 4), vCtx, sWS, sWS + 3, sT0, 1024 * j))
    I("s_cmp_eq_u32 s%d, 0" % sHf)
    I("s_cbranch_scc1 k2_done")
    ld_plain()
    vPo, vPr, vPv, vPD, vPA, vPB = 0, 1, 2, 4, 20, 40
    if PACK:
        I("v_lshrrev_b32 v%d, 4, v%d" % (vLane, vL16))
        I("s_lshl_b32 s%d, s%d, 2" % (sT0, sH))
        I("s_add_u32 s%d, s%d, s%d" % (sT0, sT0, sQs))
        I("s_mov_b32 s%d, 0" % sPn)
        I("s_mov_b32 s%d, 0x%x" % (sPv, BIG))
        I("s_mov_b32 s%d, 1280" % sPss)
        I("s_mov_b32 s%d, s%d" % (sPK, sPtr + 4)); I("s_mov_b32 s%d, s%d" % (sPK + 1, sPtr + 5))
        I("s_mov_b32 s%d, 0" % (sPK + 2))
        I("s_mov_b32 s%d, 0" % sPs); I("s_mov_b32 s%d, 0x%x" % (sPd, BIG))
        Lset = k.newlabel("pset")
        def task(cls, lo, cnt_tasks, ptr, ldw, kchunk, nchunks, dest, nbytes, vec):
            L = k.newlabel("tsk")
            I("s_cmp_lg_u32 s%d, %d" % (sA, cls)); I("s_cbranch_scc1 %s" % L)
            I("s_sub_u32 s%d, s%d, %d" % (sT1, sT0, lo))
            I("s_cmp_ge_u32 s%d, %d" % (sT1, cnt_tasks)); I("s_cbranch_scc1 %s" % L)
            M = -(-65536 // nchunks)
            assert all((t * M) >> 16 == t // nchunks for t in range(cnt_tasks))
            I("s_mul_i32 s%d, s%d, %d" % (sT2, sT1, M)); I("s_lshr_b32 s%d, s%d, 16" % (sT2, sT2))
            I("s_mul_i32 s%d, s%d, %d" % (sT3, sT2, nchunks)); I("s_sub_u32 s%d, s%d, s%d" % (sT3, sT1, sT3))
            I("s_mul_i32 s%d, s%d, %d" % (sT3, sT3, kchunk * 32 * ldw))
            I("s_lshl_b32 s%d, s%d, 7" % (sPs, sT2)); I("s_add_u32 s%d, s%d, s%d" % (sPs, sPs, sT3))
            I("s_lshl_b32 s%d, s%d, 12" % (sPd, sT2)); I("s_add_u32 s%d, s%d, s%d" % (sPd, sPd, sT3))
            I("s_add_u32 s%d, s%d, 0x%x" % (sPd, sPd, dest))
            I("s_mov_b32 s%d, %d" % (sPss, ldw))
            I("s_mov_b32 s%d, %d" % (sPn, kchunk))
            I("s_mov_b32 s%d, s%d" % (sPK, ptr)); I("s_mov_b32 s%d, s%d" % (sPK + 1, ptr + 1))
            I("s_mov_b32 s%d, 0x%x" % (sPK + 2, nbytes))
            if vec is not None:
                I("s_lshl_b32 s%d, s%d, 8" % (sPv, sT2)); I("s_add_u32 s%d, s%d, 0x%x" % (sPv, sPv, vec))
            I("s_branch %s" % Lset)
            k.label(L)
        task(1, 0, 10, sPtr + 6, 1280, 20, 1, WS_PW1, 640 * 1280, WS_V1)
        task(1, 10, 27, sPtr + 10, 3456, 20, 1, WS_PW3, 640 * 3456, WS_V3)
        task(1, 40, 20, sPtr + 8, 1280, 10, 2, WS_PW2, 640 * 1280, None)
        task(1, 64, 60, sPtr + 12, 1280, 9, 6, WS_PW4, 1728 * 1280, None)
        task(2, 0, 80, sPtr + 4, 1280, 16, 8, WS_PWO, 4096 * 1280, None)
        k.label(Lset)
        I("s_and_b32 s%d, s%d, 0xffff" % (sPK + 1, sPK + 1))
        I("s_mov_b32 s%d, 0x20000" % (sPK + 3))
        I("s_lshl_b32 s%d, s%d, 13" % (sPl, sQs)); I("s_add_u32 s%d, s%d, %d" % (sPl, sPl, LDS_X))
        I("v_lshrrev_b32 v%d, 3, v%d" % (vX0, vLane))
        I("v_and_b32 v%d, 7, v%d" % (vX1, vLane))
        I("v_lshlrev_b32 v%d, 4, v%d" % (vX1, vX1))
        I("v_mad_u32_u24 v%d, v%d, s%d, v%d" % (vPo, vX0, sPss, vX1))
        I("v_lshrrev_b32 v%d, 2, v%d" % (vX0, vLane))
        I("v_lshlrev_b32 v%d, 7, v%d" % (vX0, vX0))
        I("v_and_b32 v%d, 3, v%d" % (vX1, vLane))
        I("v_lshl_add_u32 v%d, v%d, 3, v%d" % (vPr, vX1, vX0))
        I("v_add_u32 v%d, s%d, v%d" % (vPr, sPl, vPr))
        I("v_and_b32 v%d, 15, v%d" % (vX0, vLane))
        I("s_lshl_b32 s%d, s%d, 1" % (sT1, sPss))
        I("v_mul_u32_u24 v%d, s%d, v%d" % (vPv, sT1, vX0))
        I("v_and_b32 v%d, 0x30, v%d" % (vX1, vLane))
        I("v_add3_u32 v%d, v%d, v%d, s%d" % (vPv, vPv, vX1, sPv))
        I("v_cmp_gt_u32 vcc, 3, v%d" % vX0)
        I("v_mov_b32 v%d, 0x%x" % (vX1, BIG))
        I("v_cndmask_b32 v%d, v%d, v%d, vcc" % (vPv, vX1, vPv))
        I("v_add_u32 v%d, 0x%x, v%d" % (vX2, WS_SPEC, vL16))
        I("v_cndmask_b32 v%d, v%d, v%d, vcc" % (vX2, vX1, vX2))
        for i in range(16): I("v_mov_b32 v%d, 0" % (vPA + i))
        I("s_lshl_b32 s%d, s%d, 5" % (sPds, sPss))
        I("s_lshl_b32 s%d, s%d, 3" % (sPss, sPss)); I("s_sub_u32 s%d, s%d, 1024" % (sPss, sPss))
        I("s_mov_b32 s%d, 0" % sPi)
        I("s_mov_b32 s%d, 0" % sPsp)
    def ld_iter(par, Lnext):
        I("s_cmp_eq_u32 s%d, 0" % sRem)
        I("s_cbranch_scc1 k2_done")
        if not PACK: I("s_waitcnt vmcnt(16)")
        if PACK:
            Lc, Lw = k.newlabel("cons"), k.newlabel("wd")
            I("s_cmp_lt_u32 s%d, 4" % sPi); I("s_cbranch_scc1 %s" % Lc)
            I("s_cmp_gt_u32 s%d, s%d" % (sPi, sPn)); I("s_cbranch_scc1 %s" % Lc)
            I("s_waitcnt vmcnt(34)")
            I("s_branch %s" % Lw)
            k.label(Lc)
            I("s_waitcnt vmcnt(16)")
            k.label(Lw)
        I("s_barrier")
        I("s_sub_u32 s%d, s%d, 1" % (sRem, sRem))
        dma_kv_body()
        if PACK:
            B = vPB + 4 * par
            Lnf, Lni = k.newlabel("nofin"), k.newlabel("noiss")
            I("s_add_u32 s%d, s%d, 2" % (sT0, sPn))
            I("s_cmp_ge_u32 s%d, s%d" % (sPi, sT0)); I("s_cbranch_scc1 %s" % Lnext)
            I("s_cmp_lt_u32 s%d, 2" % sPi); I("s_cbranch_scc1 %s" % Lnf)
            Lc2, Lw2 = k.newlabel("cons"), k.newlabel("wd")
            I("s_cmp_lt_u32 s%d, 3" % sPi); I("s_cbranch_scc1 %s" % Lc2)
            I("s_cmp_gt_u32 s%d, s%d" % (sPi, sPn)); I("s_cbranch_scc1 %s" % Lc2)
            I("s_waitcnt vmcnt(25)")
            I("s_branch %s" % Lw2)
            k.label(Lc2)
            I("s_waitcnt vmcnt(16)")
            k.label(Lw2)
            for nb in range(4):
                for hf in range(2):
                    I("ds_read_b64_tr_b16 %s, v%d offset:%d" % (vr(vPD + 4 * nb + 2 * hf, 2), vPr, par * 4096 + hf * 2048 + nb * 32))
            I("s_waitcnt lgkmcnt(0)")
            for nb in range(4):
                I("buffer_store_dwordx4 %s, v%d, s[%d:%d], s%d offen offset:%d" % (vr(vPD + 4 * nb, 4), vL16, sWS, sWS + 3, sPd, 1024 * nb))
            for nb in range(4):
                I("v_mfma_f32_16x16x32_bf16 %s, %s, %s, %s" % (vr(vPA + 4 * nb, 4), vr(vPD + 4 * nb, 4), vr(B, 4), vr(vPA + 4 * nb, 4)))
            I("s_add_u32 s%d, s%d, s%d" % (sPd, sPd, sPds))
            Lnv = k.newlabel("novec")
            I("s_add_u32 s%d, s%d, 1" % (sT0, sPn))
            I("s_cmp_lg_u32 s%d, s%d" % (sPi, sT0)); I("s_cbranch_scc1 %s" % Lnv)
            for nb in range(4):
                I("buffer_store_dwordx4 %s, v%d, s[%d:%d], 0 offen offset:%d" % (vr(vPA + 4 * nb, 4), vPv, sWS, sWS + 3, 64 * nb))
            k.label(Lnv)
            k.label(Lnf)
            I("s_cmp_ge_u32 s%d, s%d" % (sPi, sPn)); I("s_cbranch_scc1 %s" % Lni)
            I("s_add_u32 m0, s%d, %d" % (sPl, 4096 * par))
            I("s_mov_b32 s%d, s%d" % (sT0, sPs))
            for i in range(4):
                I("buffer_load_dwordx4 v%d, s[%d:%d], s%d offen offset:%d lds" % (vPo, sPK, sPK + 3, sT0, 1024 * i))
                if i < 3: I("s_add_u32 s%d, s%d, s%d" % (sT0, sT0, sPss))
            I("buffer_load_dwordx4 %s, v%d, s[%d:%d], s%d offen" % (vr(B, 4), vX2, sWS, sWS + 3, sPsp))
            I("s_add_u32 s%d, s%d, s%d" % (sPs, sPs, sPds))
            I("s_add_u32 s%d, s%d, 1024" % (sPsp, sPsp))
            k.label(Lni)
            I("s_add_u32 s%d, s%d, 1" % (sPi, sPi))
    k.label("k2_ld0")
    ld_iter(0, "k2_ld1")
    k.label("k2_ld1")
    ld_iter(1, "k2_ld0")
    I("s_branch k2_ld0")
    k.label("k2_done")
    st.stamp()
    st.dump(sWS, sWv, vX0, sT0, 8, region=1)
    I("s_endpgm")
    for f in fixups: emit_fixup(*f)
    k.label(L_end)
    I("s_endpgm")
    return k
```

```python
from fw import *
from layout import *
from k1 import srd, BIG

GC1 = -2.0 * math.sqrt(2.0 / math.pi) * LOG2E
GC2 = GC1 * 0.044715
K = 1024
G = [
    dict(idx=3, KS=128, kpt=4, NBT=5, NBG=40, pw=WS_PWO, act=WS_CTX, W=(0, 4), A=(80 * K, 5)),
    dict(idx=4, KS=20, kpt=4, NBT=5, NBG=40, pw=WS_PW1, act=WS_Y, W=(0, 4), A=(80 * K, 5)),
    dict(idx=5, KS=20, kpt=4, NBT=5, NBG=40, pw=WS_PW2, act=WS_HH, W=(0, 4), A=(80 * K, 5)),
    dict(idx=6, KS=20, kpt=2, NBT=14, NBG=108, pw=WS_PW3, act=WS_X1, W=(0, 4), A=(112 * K, 6)),
    dict(idx=7, KS=54, kpt=4, NBT=5, NBG=40, pw=WS_PW4, act=WS_U, W=(0, 4), A=(80 * K, 5)),
]
SC = " sc1"

def gen_kb():
    k = Kern("kb_kernel", 256, 512, 163840)
    I = k.I
    T = 0
    for g in G:
        g["nt"] = -(-g["KS"] // g["kpt"]); g["T0"] = T; T += g["nt"]
        g["wb"] = g["kpt"] * g["NBT"] * K; g["ab"] = g["kpt"] * 4 * K
    NT = T
    fills = []
    def free_at(lo, hi, upto):
        b = 0
        for f in fills[:upto]:
            if f[2] < hi and lo < f[3]: b = max(b, f[0] + 1)
        return b
    for gi, g in enumerate(G):
        for kind, (base, n), sz in (("W", g["W"], g["wb"]), ("A", g["A"], g["ab"])):
            order = sorted(range(n), key=lambda s: (free_at(base + s * sz, base + (s + 1) * sz, len(fills)), s))
            g[kind + "ord"] = order
        for t in range(g["nt"]):
            for kind, (base, n), sz in (("A", g["A"], g["ab"]), ("W", g["W"], g["wb"])):
                s = g[kind + "ord"][t % n]
                fills.append((g["T0"] + t, kind, base + s * sz, base + (s + 1) * sz, gi, t))
    allowed = [free_at(f[2], f[3], i) for i, f in enumerate(fills)]
    slot = {(f[0], f[1]): f[2] for f in fills}

    sWS, sX = 8, 12
    sWv, sW4, sRb, sNt, sNb5, sNb14, sT0, sT1, sT2, sT3, sSo = 16, 17, 18, 19, 20, 21, 22, 23, 24, 25, 26
    sRk = 27
    sOff = 28
    sPtr = 36
    sPar, sWb = 42, 43
    sPa = 44
    vL16, vLane = 1, 2
    L_end = "kb_end"
    I("s_cmp_ge_u32 s2, 256")
    I("s_cbranch_scc1 %s" % L_end)
    st = Stamps(k, 54, 24)
    st.stamp(True); st.stamp()
    I("s_load_dwordx2 s[%d:%d], s[0:1], %d" % (sPtr, sPtr + 1, KA_WS))
    I("s_load_dwordx2 s[%d:%d], s[0:1], %d" % (sPtr + 2, sPtr + 3, KA_X))
    I("s_load_dwordx2 s[%d:%d], s[0:1], %d" % (sPtr + 4, sPtr + 5, KA_OUT))
    I("v_lshrrev_b32 v3, 6, v0")
    I("v_and_b32 v%d, 63, v0" % vLane)
    I("v_readfirstlane_b32 s%d, v3" % sWv)
    I("v_lshlrev_b32 v%d, 4, v%d" % (vL16, vLane))
    I("s_and_b32 s%d, s2, 7" % sT0)
    I("s_lshr_b32 s%d, s2, 3" % sT1)
    I("s_and_b32 s%d, s%d, 3" % (sRb, sT1))
    I("s_lshl_b32 s%d, s%d, 2" % (sT0, sT0))
    I("s_add_u32 s%d, s%d, s%d" % (sRb, sRb, sT0))
    I("s_lshr_b32 s%d, s2, 5" % sNt)
    I("s_mul_i32 s%d, s%d, 5" % (sNb5, sNt))
    I("s_mul_i32 s%d, s%d, 14" % (sNb14, sNt))
    I("s_min_u32 s%d, s%d, 94" % (sNb14, sNb14))
    I("s_and_b32 s%d, s%d, 1" % (sPar, sNt))
    I("s_and_b32 s%d, s%d, 3" % (sW4, sWv))
    I("s_lshl_b32 s%d, s%d, 2" % (sRk, sRb))
    I("s_add_u32 s%d, s%d, s%d" % (sRk, sRk, sW4))
    I("s_cmp_lt_u32 s%d, 4" % sWv)
    I("s_cbranch_scc1 kb_compute")

    vm = Cnt(k, "vmcnt", 63)
    vAo = 4
    vFl, vPl, vT = 8, 9, 10
    sM5, sM7, sM4, sM2 = 44, 45, 46, 47
    I("s_mul_i32 s%d, s%d, %d" % (sM5, sW4, 5 * K))
    I("s_mul_i32 s%d, s%d, %d" % (sM7, sW4, 7 * K))
    I("s_lshl_b32 s%d, s%d, 12" % (sM4, sW4))
    I("s_lshl_b32 s%d, s%d, 11" % (sM2, sW4))
    sWo = 48
    sD5, sD7 = 28, 29
    I("s_cmp_eq_u32 s%d, 0" % sPar)
    I("s_cselect_b32 s%d, 4096, -1024" % sD5) if False else None
    I("s_mov_b32 s%d, -1024" % sD5)
    I("s_cselect_b32 s%d, 4096, s%d" % (sD5, sD5))
    I("s_and_b32 s%d, s%d, 1" % (sT2, sW4))
    I("s_cmp_eq_u32 s%d, 0" % sT2)
    I("s_mov_b32 s%d, -1024" % sD7)
    I("s_cselect_b32 s%d, 6144, s%d" % (sD7, sD7))
    for gi, g in enumerate(G):
        if g["NBT"] == 5:
            I("s_mul_i32 s%d, s%d, %d" % (sT0, sW4, g["NBG"]))
            I("s_add_u32 s%d, s%d, s%d" % (sT0, sT0, sNb5))
            I("s_add_u32 s%d, s%d, s%d" % (sT0, sT0, sPar))
        else:
            I("s_lshr_b32 s%d, s%d, 1" % (sT0, sW4))
            I("s_mul_i32 s%d, s%d, %d" % (sT0, sT0, g["NBG"]))
            I("s_lshl_b32 s%d, s%d, 3" % (sT1, sT2))
            I("s_add_u32 s%d, s%d, s%d" % (sT0, sT0, sT1))
            I("s_add_u32 s%d, s%d, s%d" % (sT0, sT0, sNb14))
        I("s_lshl_b32 s%d, s%d, 10" % (sT0, sT0))
        I("s_add_u32 s%d, s%d, 0x%x" % (sWo + gi, sT0, g["pw"]))
    def act_setup(g):
        if g["idx"] != 5:
            I("s_mul_i32 s%d, s%d, %d" % (sT0, sRk, g["KS"] * K))
            I("s_add_u32 s%d, s%d, 0x%x" % (sT0, sT0, g["act"]))
            I("v_add_u32 v%d, s%d, v%d" % (vAo, sT0, vL16))
        else:
            I("v_and_b32 v%d, 15, v%d" % (vT, vLane))
            I("s_lshl_b32 s%d, s%d, 4" % (sT0, sRk))
            I("v_add_u32 v%d, s%d, v%d" % (vT, sT0, vT))
            I("v_and_b32 v%d, 0x300, v%d" % (vT + 1, vL16))
            I("v_add_u32 v%d, 0x%x, v%d" % (vT + 1, g["act"], vT + 1))
            I("v_mov_b32 v%d, 0x%x" % (vT + 4, BIG))
            for gi_, dl in enumerate((-1, 1, -2, 2)):
                I("v_add_u32 v%d, %d, v%d" % (vT + 2, dl, vT))
                I("v_cmp_gt_u32 vcc, 2048, v%d" % (vT + 2))
                I("v_lshrrev_b32 v%d, 4, v%d" % (vT + 3, vT + 2))
                I("v_mul_u32_u24 v%d, 20480, v%d" % (vT + 3, vT + 3))
                I("v_and_b32 v%d, 15, v%d" % (vT + 2, vT + 2))
                I("v_lshl_add_u32 v%d, v%d, 4, v%d" % (vT + 3, vT + 2, vT + 3))
                I("v_add_u32 v%d, v%d, v%d" % (vT + 3, vT + 3, vT + 1))
                I("v_cndmask_b32 v%d, v%d, v%d, vcc" % (vAo + gi_, vT + 4, vT + 3))
    act_setup(G[0])
    I("s_waitcnt lgkmcnt(0)")
    srd(k, sWS, sPtr, sPtr + 1, WS_SIZE)
    def issue(f):
        tick, kind, lo, hi, gi, t = f
        g = G[gi]
        if kind == "W":
            n = 5 if g["NBT"] == 5 else 7
            sM_ = sM5 if n == 5 else sM7
            c0 = t * g["kpt"] * g["NBG"] * K
            ld = lambda off: (I("buffer_load_dwordx4 v%d, s[%d:%d], s%d offen offset:%d lds" % (vL16, sWS, sWS + 3, sSo, off)), vm.issue("t%d" % tick))
            I("s_add_u32 m0, s%d, %d" % (sM_, lo))
            I("s_add_u32 s%d, s%d, %d" % (sSo, sWo + gi, c0))
            for i in range(4): ld(K * i)
            I("s_add_u32 m0, s%d, %d" % (sM_, lo + (n - 1) * K))
            I("s_add_u32 s%d, s%d, s%d" % (sSo, sSo, sD5 if n == 5 else sD7))
            ld(0)
            if n == 7:
                I("s_add_u32 m0, s%d, %d" % (sM_, lo + 4 * K))
                I("s_add_u32 s%d, s%d, %d" % (sSo, sWo + gi, c0 + 4 * K))
                ld(0); ld(K)
        else:
            I("s_add_u32 m0, s%d, %d" % (sM4 if g["kpt"] == 4 else sM2, lo))
            I("s_mov_b32 s%d, %d" % (sSo, t * g["kpt"] * K))
            for i in range(g["kpt"]):
                ks = t * g["kpt"] + i
                if ks >= g["KS"]: continue
                va = vAo + (ks // 5 if g["idx"] == 5 else 0)
                I("buffer_load_dwordx4 v%d, s[%d:%d], s%d offen offset:%d%s lds" % (va, sWS, sWS + 3, sSo, K * i, SC if gi else "")); vm.issue("t%d" % tick)
    def poll(gi):
        g = G[gi]
        base = WS_FL + (gi - 1) * 8192
        if g["idx"] == 5:
            I("v_lshrrev_b32 v%d, 4, v%d" % (vT, vLane))
            I("v_min_u32 v%d, 2, v%d" % (vT, vT))
            I("s_sub_u32 s%d, s%d, 1" % (sT0, sRk))
            I("v_add_u32 v%d, s%d, v%d" % (vT, sT0, vT))
            I("v_max_i32 v%d, 0, v%d" % (vT, vT))
            I("v_min_i32 v%d, 127, v%d" % (vT, vT))
            I("v_lshlrev_b32 v%d, 6, v%d" % (vT, vT))
        else:
            I("s_lshl_b32 s%d, s%d, 6" % (sT0, sRk))
            I("v_mov_b32 v%d, s%d" % (vT, sT0))
        I("v_and_b32 v%d, %d, v%d" % (vT + 1, 15 if g["idx"] == 7 else 14, vLane))
        I("v_lshl_add_u32 v%d, v%d, 2, v%d" % (vFl, vT + 1, vT))
        I("v_add_u32 v%d, 0x%x, v%d" % (vFl, base, vFl))
        act_setup(g)
        Lp, Lok = k.newlabel("poll"), k.newlabel("pok")
        I("s_mov_b32 s%d, 0x40000" % sT3)
        st.stamp()
        k.label(Lp)
        I("buffer_load_dword v%d, v%d, s[%d:%d], 0 offen sc1" % (vPl, vFl, sWS, sWS + 3))
        I("s_waitcnt vmcnt(0)")
        I("v_cmp_eq_u32 vcc, 0, v%d" % vPl)
        I("s_cbranch_vccz %s" % Lok)
        I("s_sleep 1")
        I("s_sub_u32 s%d, s%d, 1" % (sT3, sT3))
        I("s_cmp_lg_u32 s%d, 0" % sT3)
        I("s_cbranch_scc1 %s" % Lp)
        k.label(Lok)
        st.stamp()
        vm.q = []
    done = [False] * len(fills)
    polled = [True] + [False] * 4
    def issue_allowed(b):
        for i, f in enumerate(fills):
            if done[i] or allowed[i] > b: continue
            if f[1] == "A" and not polled[f[4]]: continue
            issue(f); done[i] = True
    issue_allowed(0)
    for t in range(NT):
        gi = max(i for i, g in enumerate(G) if g["T0"] <= t)
        if not polled[gi]:
            poll(gi); polled[gi] = True
            issue_allowed(t - 1)
        assert all(done[i] for i, f in enumerate(fills) if f[0] == t), t
        vm.wait("t%d" % t)
        if t == G[gi]["T0"]: st.stamp()
        I("s_barrier")
        issue_allowed(t)
    assert all(done)
    while DIAG and st.n < 21: st.stamp()
    st.dump(sWS, sWv, vT, sT0, 8, region=2)
    I("s_endpgm")

    k.label("kb_compute")
    st.n = 2
    vm = Cnt(k, "vmcnt", 63)
    p = 4
    def alloc(n, al=1):
        nonlocal p
        p = (p + al - 1) // al * al
        r = p; p += n
        return r
    vAcc = alloc(56, 4)
    vFr = alloc(72, 4)
    vX2 = alloc(20, 4); vX1 = alloc(20, 4)
    vE = alloc(40, 4)
    vT = alloc(12, 4)
    vRow = alloc(8, 4)
    vA = alloc(2)
    vVec, vVec4, vFo, vRM, vRM4 = alloc(1), alloc(1), alloc(1), alloc(1), alloc(1)
    vAa = alloc(2)
    vE3 = {3: vAcc + 20, 4: vX1}
    assert p <= 256, p
    vS8 = vFr + 40; vPk = vFr; vSt = vAcc + 24
    I("v_mov_b32 v%d, v%d" % (vA, vL16))
    I("v_add_u32 v%d, 65536, v%d" % (vA + 1, vA))
    def setup80():
        I("s_add_u32 s%d, s%d, s%d" % (sT2, sNb5, sPar))
        I("s_lshl_b32 s%d, s%d, 9" % (sOff, sT2))
        I("s_lshr_b32 s%d, s%d, 1" % (sT0, sNt))
        I("s_mul_i32 s%d, s%d, 5120" % (sT0, sT0))
        I("s_lshl_b32 s%d, s%d, 3" % (sT1, sPar))
        I("s_add_u32 s%d, s%d, s%d" % (sT0, sT0, sT1))
        I("s_add_u32 s%d, s%d, 2048" % (sOff + 1, sT0))
        I("s_add_u32 s%d, s%d, 4" % (sT3, sNb5))
        I("s_cmp_eq_u32 s%d, 0" % sPar)
        I("s_cselect_b32 s%d, s%d, s%d" % (sT3, sT3, sNb5))
        I("v_and_b32 v%d, 0x30, v%d" % (vT, vLane))
        I("s_lshl_b32 s%d, s%d, 6" % (sT2, sT2))
        I("s_lshl_b32 s%d, s%d, 6" % (sT3, sT3))
        I("v_add_u32 v%d, s%d, v%d" % (vVec, sT2, vT))
        I("v_add_u32 v%d, s%d, v%d" % (vVec4, sT3, vT))
        I("s_mul_i32 s%d, s%d, 20480" % (sT0, sRk))
        I("v_add_u32 v%d, s%d, v%d" % (vFo, sT0, vL16))
        I("s_lshl_b32 s%d, s%d, 12" % (sT0, sW4))
        I("s_add_u32 s%d, s%d, %d" % (sT0, sT0, 80 * K))
        I("v_add_u32 v%d, s%d, v%d" % (vAa, sT0, vL16))
        I("v_add_u32 v%d, 65536, v%d" % (vAa + 1, vAa))
        I("v_mov_b32 v%d, v%d" % (vA, vL16))
        I("v_add_u32 v%d, 65536, v%d" % (vA + 1, vA))
    def rowoff(dst, mul, srk=sRk, add=0):
        I("v_and_b32 v%d, 15, v%d" % (dst, vLane))
        I("s_add_u32 s%d, s%d, %d" % (sT0, srk, add))
        I("s_lshl_b32 s%d, s%d, 4" % (sT0, sT0))
        I("v_add_u32 v%d, s%d, v%d" % (dst, sT0, dst))
        I("v_mul_u32_u24 v%d, %d, v%d" % (dst, mul, dst))
    setup80()
    rowoff(vRM, 1280)
    I("v_lshrrev_b32 v%d, 1, v%d" % (vT, vVec4))
    I("v_add_u32 v%d, v%d, v%d" % (vRM4, vRM, vT))
    I("v_lshrrev_b32 v%d, 1, v%d" % (vT, vVec))
    I("v_add_u32 v%d, v%d, v%d" % (vRM, vRM, vT))
    I("s_waitcnt lgkmcnt(0)")
    srd(k, sWS, sPtr, sPtr + 1, WS_SIZE)
    srd(k, sX, sPtr + 2, sPtr + 3, 2048 * 640 * 2)
    def ldvec(dst, base, n=5):
        I("s_mov_b32 s%d, %d" % (sSo, base))
        for nb in range(n):
            last = nb == n - 1
            I("buffer_load_dwordx4 %s, v%d, s[%d:%d], s%d offen offset:%d" % (vr(dst + 4 * nb, 4), vVec4 if last else vVec, sWS, sWS + 3, sSo, 0 if last else 64 * nb)); vm.issue("e")
    def allred(v, tmp):
        for sw in ("v_permlane16_swap_b32", "v_permlane32_swap_b32"):
            I("v_mov_b32 v%d, v%d" % (tmp, v))
            I("%s v%d, v%d" % (sw, v, tmp))
            I("v_add_f32 v%d, v%d, v%d" % (v, v, tmp))
    INV = f32bits(1.0 / 640)
    sR2 = sWb
    def pre_loads(idx, after_barrier):
        M = lambda seg: WS_MOD + seg * 2560
        if not after_barrier:
            if idx == 3:
                ldvec(vE, M(2)); ldvec(vE + 20, M(4)); ldvec(vE3[3], M(3))
                for nb in range(5):
                    I("buffer_load_dwordx2 %s, v%d, s[%d:%d], 0 offen offset:%d" % (vr(vX1 + 2 * nb, 2), vRM4 if nb == 4 else vRM, sX, sX + 3, 0 if nb == 4 else 32 * nb)); vm.issue("e")
            if idx == 4:
                ldvec(vE, WS_V1); ldvec(vE + 20, WS_V1 + 2560); ldvec(vE3[4], WS_V1 + 5120)
            if idx == 5:
                ldvec(vE, M(4)); ldvec(vE + 20, M(3))
            if idx == 6: ldvec(vE, WS_V3 + 2 * 6912, 7)
            if idx == 7: ldvec(vE, M(5))
        else:
            if idx == 4:
                rowoff(vT + 8, 256)
                I("v_and_b32 v%d, 0x30, v%d" % (vT, vLane))
                I("v_lshlrev_b32 v%d, 2, v%d" % (vT, vT))
                I("v_add_u32 v%d, v%d, v%d" % (vT + 8, vT + 8, vT))
                I("s_mov_b32 s%d, 0x%x" % (sSo, WS_ST1))
                for i in range(4):
                    I("buffer_load_dwordx4 %s, v%d, s[%d:%d], s%d offen offset:%d sc1" % (vr(vSt + 4 * i, 4), vT + 8, sWS, sWS + 3, sSo, 16 * i)); vm.issue("e")
                I("s_lshl_b32 s%d, s%d, 8" % (sSo, sRk))
                I("s_add_u32 s%d, s%d, 0x%x" % (sSo, sSo, WS_ST1 + 2048 * 256))
                for i in range(4):
                    I("buffer_load_dwordx4 %s, v%d, s[%d:%d], s%d offen offset:%d sc1" % (vr(vSt + 16 + 4 * i, 4), vT, sWS, sWS + 3, sSo, 16 * i)); vm.issue("e")
            if idx == 6:
                for mb in range(2):
                    rowoff(vT + 8, 64, sR2, mb)
                    I("v_and_b32 v%d, 0x30, v%d" % (vT, vLane))
                    I("v_add_u32 v%d, v%d, v%d" % (vT + 8, vT + 8, vT))
                    I("s_mov_b32 s%d, 0x%x" % (sSo, WS_ST2))
                    I("buffer_load_dwordx4 %s, v%d, s[%d:%d], s%d offen sc1" % (vr(vE + 32 + 4 * mb, 4), vT + 8, sWS, sWS + 3, sSo)); vm.issue("e")
    def row_scalars(idx):
        if idx == 4:
            vm.wait("e")
            for base in (vSt, vSt + 16):
                for i in range(6):
                    I("v_add_f32 v%d, v%d, v%d" % (base + i, base + i, base + 8 + i))
                    I("v_mul_f32 v%d, 0x%x, v%d" % (base + i, INV, base + i))
                for i in range(6 if base == vSt else 5): allred(base + i, vT + (i % 4))
            mx, mxx, my, myy, myg, mysb = [vSt + i for i in range(6)]
            cg, csb, cgg, cgsb, csbsb = [vSt + 16 + i for i in range(5)]
            mu1, r1, t, u, mu2, r2 = vRow + 4, vRow + 5, vT, vT + 1, vT + 2, vT + 3
            I("v_mov_b32 v%d, v%d" % (mu1, mx))
            I("v_fma_f32 v%d, -v%d, v%d, v%d" % (t, mx, mx, mxx))
            I("v_max_f32 v%d, 0, v%d" % (t, t))
            I("v_add_f32 v%d, 0x%x, v%d" % (t, f32bits(1e-5), t))
            I("v_rsq_f32 v%d, v%d" % (r1, t))
            I("v_fma_f32 v%d, -v%d, v%d, v%d" % (t, mu1, cg, my))
            I("v_fma_f32 v%d, v%d, v%d, v%d" % (mu2, r1, t, csb))
            I("v_add_f32 v%d, v%d, v%d" % (t, myg, myg))
            I("v_fma_f32 v%d, -v%d, v%d, v%d" % (t, mu1, cgg, t))
            I("v_fma_f32 v%d, -v%d, v%d, v%d" % (t, mu1, t, myy))
            I("v_fma_f32 v%d, -v%d, v%d, v%d" % (u, mu1, cgsb, mysb))
            I("v_add_f32 v%d, v%d, v%d" % (u, u, u))
            I("v_fma_f32 v%d, v%d, v%d, v%d" % (t, r1, t, u))
            I("v_fma_f32 v%d, v%d, v%d, v%d" % (t, r1, t, csbsb))
            I("v_fma_f32 v%d, -v%d, v%d, v%d" % (t, mu2, mu2, t))
            I("v_max_f32 v%d, 0, v%d" % (t, t))
            I("v_add_f32 v%d, 0x%x, v%d" % (t, f32bits(1e-5), t))
            I("v_rsq_f32 v%d, v%d" % (r2, t))
            I("v_mul_f32 v%d, v%d, v%d" % (vRow, r1, r2))
            I("v_mul_f32 v%d, v%d, v%d" % (vRow + 1, vRow, mu1))
            I("v_sub_f32 v%d, 0, v%d" % (vRow + 1, vRow + 1))
            I("v_mul_f32 v%d, v%d, v%d" % (vRow + 3, r2, mu2))
            I("v_sub_f32 v%d, 0, v%d" % (vRow + 3, vRow + 3))
            for j in range(20):
                I("v_mul_f32 v%d, v%d, v%d" % (vE + j, vE + j, vRow + 1))
                I("v_fmac_f32 v%d, v%d, v%d" % (vE + j, vE + 20 + j, r2))
                I("v_fmac_f32 v%d, v%d, v%d" % (vE + j, vE3[4] + j, vRow + 3))
        if idx == 5:
            vm.wait("e")
            for j in range(20):
                I("v_sub_f32 v%d, v%d, v%d" % (vX1 + j, vX2 + j, vRow + 4))
                I("v_mul_f32 v%d, v%d, v%d" % (vX1 + j, vX1 + j, vRow + 5))
                I("v_fma_f32 v%d, v%d, v%d, v%d" % (vX1 + j, vX1 + j, vE + j, vE + 20 + j))
        if idx == 6:
            vm.wait("e")
            for mb in range(2):
                b = vE + 32 + 4 * mb
                for i in range(2):
                    I("v_add_f32 v%d, v%d, v%d" % (b + i, b + i, b + 2 + i))
                    I("v_mul_f32 v%d, 0x%x, v%d" % (b + i, INV, b + i))
                    allred(b + i, vT + i)
                I("v_fma_f32 v%d, -v%d, v%d, v%d" % (vT, b, b, b + 1))
                I("v_max_f32 v%d, 0, v%d" % (vT, vT))
                I("v_add_f32 v%d, 0x%x, v%d" % (vT, f32bits(1e-5), vT))
                I("v_rsq_f32 v%d, v%d" % (vRow + 2 * mb, vT))
                I("v_mul_f32 v%d, v%d, v%d" % (vRow + 2 * mb + 1, vRow + 2 * mb, b))
                I("v_sub_f32 v%d, 0, v%d" % (vRow + 2 * mb + 1, vRow + 2 * mb + 1))
        if idx == 7:
            vm.wait("e")
            for j in range(20):
                I("v_fmac_f32 v%d, v%d, v%d" % (vX2 + j, vX1 + j, vE + j))
    def gelu4(a):
        t = vT
        for h in (0, 2): I("v_pk_mul_f32 %s, %s, %s" % (vr(t + h, 2), vr(a + h, 2), vr(a + h, 2)))
        for h in (0, 2): I("v_pk_fma_f32 %s, %s, s[%d:%d], %s" % (vr(t + h, 2), vr(t + h, 2), sPa, sPa + 1, vr(vRow + 6, 2)))
        for h in (0, 2): I("v_pk_mul_f32 %s, %s, %s" % (vr(t + h, 2), vr(t + h, 2), vr(a + h, 2)))
        for r in range(4): I("v_exp_f32 v%d, v%d" % (t + r, t + r))
        for h in (0, 2): I("v_pk_add_f32 %s, %s, s[%d:%d]" % (vr(t + h, 2), vr(t + h, 2), sPa + 2, sPa + 3))
        for r in range(4): I("v_rcp_f32 v%d, v%d" % (t + r, t + r))
        for h in (0, 2): I("v_pk_mul_f32 %s, %s, %s" % (vr(a + h, 2), vr(a + h, 2), vr(t + h, 2)))
    I("s_mov_b32 s%d, 0x%x" % (sPa, f32bits(GC2))); I("s_mov_b32 s%d, 0x%x" % (sPa + 1, f32bits(GC2)))
    I("s_mov_b32 s%d, 1.0" % (sPa + 2)); I("s_mov_b32 s%d, 1.0" % (sPa + 3))
    I("v_mov_b32 v%d, 0x%x" % (vRow + 6, f32bits(GC1))); I("v_mov_b32 v%d, 0x%x" % (vRow + 7, f32bits(GC1)))
    def stf16(src4, addr, nb, pk, n=5):
        I("v_cvt_pk_bf16_f32 v%d, v%d, v%d" % (pk + 2 * nb, src4, src4 + 1))
        I("v_cvt_pk_bf16_f32 v%d, v%d, v%d" % (pk + 2 * nb + 1, src4 + 2, src4 + 3))
        if nb == n - 1:
            I("buffer_store_dwordx2 %s, v%d, s[%d:%d], s%d offen sc1" % (vr(pk + 2 * nb, 2), addr, sWS, sWS + 3, sOff + 1))
        elif nb % 2 == 1:
            I("buffer_store_dwordx4 %s, v%d, s[%d:%d], s%d offen offset:%d sc1" % (vr(pk + 2 * nb - 2, 4), addr, sWS, sWS + 3, sOff, 512 * (nb - 1)))
    def red4(a, b, cc, d):
        I("v_permlane16_swap_b32 v%d, v%d" % (a, b))
        I("v_permlane16_swap_b32 v%d, v%d" % (cc, d))
        I("v_add_f32 v%d, v%d, v%d" % (a, a, b))
        I("v_add_f32 v%d, v%d, v%d" % (cc, cc, d))
        I("v_permlane32_swap_b32 v%d, v%d" % (a, cc))
        I("v_add_f32 v%d, v%d, v%d" % (a, a, cc))
    def signal(gi):
        g = G[gi]
        if g["idx"] == 6:
            I("s_lshl_b32 s%d, s%d, 6" % (sT0, sR2))
            I("s_lshr_b32 s%d, s%d, 1" % (sT1, sW4))
            I("s_lshl_b32 s%d, s%d, 2" % (sT1, sT1))
            I("s_add_u32 s%d, s%d, s%d" % (sT0, sT0, sT1))
        else:
            I("s_lshl_b32 s%d, s%d, 6" % (sT0, sRk))
        I("s_lshl_b32 s%d, s%d, 3" % (sT1, sNt))
        I("s_add_u32 s%d, s%d, s%d" % (sT0, sT0, sT1))
        I("s_add_u32 s%d, s%d, 0x%x" % (sT0, sT0, WS_FL + gi * 8192))
        I("v_lshlrev_b32 v%d, 6, v%d" % (vT, vLane))
        I("v_add_u32 v%d, s%d, v%d" % (vT, sT0, vT))
        I("v_mov_b32 v%d, 1" % (vT + 1))
        st.stamp()
        I("s_waitcnt vmcnt(0)"); vm.q = []
        st.stamp()
        I("s_mov_b64 exec, %d" % (3 if g["idx"] == 6 else 1))
        I("buffer_store_dword v%d, v%d, s[%d:%d], 0 offen sc1" % (vT + 1, vT, sWS, sWS + 3)); vm.issue("flag")
        I("s_mov_b64 exec, -1")
    def cst_stats():
        vm.wait("e")
        S = vAcc + 40
        for i in range(8): I("v_mov_b32 v%d, 0" % (S + i))
        for j in range(20):
            g_, s_ = vE + 20 + j, vE3[3] + j
            I("v_add_f32 v%d, v%d, v%d" % (S, S, g_))
            I("v_add_f32 v%d, v%d, v%d" % (S + 1, S + 1, s_))
            I("v_fmac_f32 v%d, v%d, v%d" % (S + 2, g_, g_))
            I("v_fmac_f32 v%d, v%d, v%d" % (S + 3, g_, s_))
            I("v_fmac_f32 v%d, v%d, v%d" % (S + 4, s_, s_))
        I("s_lshl_b32 s%d, s%d, 8" % (sT0, sRk))
        I("s_add_u32 s%d, s%d, %d" % (sT0, sT0, 2048 * 256))
        I("v_mov_b32 v%d, s%d" % (vT + 10, sT0))
        st_stats(S, vT + 10)
        for nb in range(5):
            for q in range(2):
                I("v_lshlrev_b32 v%d, 16, v%d" % (vX2 + 4 * nb + 2 * q, vX1 + 2 * nb + q))
                I("v_and_b32 v%d, 0xffff0000, v%d" % (vX2 + 4 * nb + 2 * q + 1, vX1 + 2 * nb + q))
    def st_stats(S, rowreg):
        red4(S, S + 1, S + 2, S + 3)
        red4(S + 4, S + 5, S + 6, S + 7)
        I("v_lshrrev_b32 v%d, 4, v%d" % (vT, vLane))
        I("v_lshl_add_u32 v%d, v%d, 2, v%d" % (rowreg, vT, rowreg))
        I("s_lshl_b32 s%d, s%d, 5" % (sT0, sNt))
        I("s_add_u32 s%d, s%d, 0x%x" % (sT0, sT0, WS_ST1))
        I("buffer_store_dword v%d, v%d, s[%d:%d], s%d offen sc1" % (S, rowreg, sWS, sWS + 3, sT0)); vm.issue("s")
        I("buffer_store_dword v%d, v%d, s[%d:%d], s%d offen offset:16 sc1" % (S + 4, rowreg, sWS, sWS + 3, sT0)); vm.issue("s")
    def epilogue(idx):
        if idx == 3:
            I("v_add_u32 v%d, 0x%x, v%d" % (vT + 9, WS_Y, vFo))
            for i in range(8): I("v_mov_b32 v%d, 0" % (vS8 + i))
            for nb in range(5):
                a = vAcc + 4 * nb; x = vX2 + 4 * nb
                for r in range(4):
                    I("v_fmac_f32 v%d, v%d, v%d" % (x + r, a + r, vE + 4 * nb + r))
                    I("v_mul_f32 v%d, v%d, v%d" % (a + r, x + r, vE + 20 + 4 * nb + r))
                stf16(a, vT + 9, nb, vPk)
            for nb in range(5):
                a = vAcc + 4 * nb; x = vX2 + 4 * nb
                for r in range(4):
                    y = a + r
                    I("v_add_f32 v%d, v%d, v%d" % (vS8, vS8, x + r))
                    I("v_fmac_f32 v%d, v%d, v%d" % (vS8 + 1, x + r, x + r))
                    I("v_add_f32 v%d, v%d, v%d" % (vS8 + 2, vS8 + 2, y))
                    I("v_fmac_f32 v%d, v%d, v%d" % (vS8 + 3, y, y))
                    I("v_fmac_f32 v%d, v%d, v%d" % (vS8 + 4, y, vE + 20 + 4 * nb + r))
                    I("v_fmac_f32 v%d, v%d, v%d" % (vS8 + 5, y, vE3[3] + 4 * nb + r))
            rowoff(vT + 10, 256)
            st_stats(vS8, vT + 10)
        if idx == 4:
            I("v_add_u32 v%d, 0x%x, v%d" % (vT + 8, WS_HH, vFo))
            for nb in range(5):
                a = vAcc + 4 * nb
                for r in range(4):
                    I("v_fma_f32 v%d, v%d, v%d, v%d" % (a + r, a + r, vRow, vE + 4 * nb + r))
                gelu4(a)
                stf16(a, vT + 8, nb, vPk)
        if idx == 5:
            I("v_add_u32 v%d, 0x%x, v%d" % (vT + 8, WS_X1, vFo))
            for i in range(2): I("v_mov_b32 v%d, 0" % (vS8 + i))
            for nb in range(5):
                a = vAcc + 4 * nb; x = vX1 + 4 * nb
                for h in (0, 2): I("v_pk_add_f32 %s, %s, %s" % (vr(x + h, 2), vr(x + h, 2), vr(a + h, 2)))
                stf16(x, vT + 8, nb, vPk)
            for j in range(20):
                I("v_add_f32 v%d, v%d, v%d" % (vS8, vS8, vX1 + j))
                I("v_fmac_f32 v%d, v%d, v%d" % (vS8 + 1, vX1 + j, vX1 + j))
            I("v_permlane16_swap_b32 v%d, v%d" % (vS8, vS8 + 1))
            I("v_add_f32 v%d, v%d, v%d" % (vS8, vS8, vS8 + 1))
            I("v_mov_b32 v%d, v%d" % (vS8 + 1, vS8))
            I("v_permlane32_swap_b32 v%d, v%d" % (vS8, vS8 + 1))
            I("v_add_f32 v%d, v%d, v%d" % (vS8, vS8, vS8 + 1))
            rowoff(vT + 10, 64)
            I("v_and_b32 v%d, 16, v%d" % (vT, vLane))
            I("v_lshrrev_b32 v%d, 2, v%d" % (vT, vT))
            I("v_add_u32 v%d, v%d, v%d" % (vT + 10, vT + 10, vT))
            I("s_lshl_b32 s%d, s%d, 3" % (sT0, sNt))
            I("s_add_u32 s%d, s%d, 0x%x" % (sT0, sT0, WS_ST2))
            I("buffer_store_dword v%d, v%d, s[%d:%d], s%d offen sc1" % (vS8, vT + 10, sWS, sWS + 3, sT0))
        if idx == 6:
            for mb in range(2):
                I("v_add_u32 v%d, 0x%x, v%d" % (vT + 8 + mb, WS_U + mb * 54 * K, vFo))
            for mb in range(2):
                for nb in range(7):
                    a = vAcc + 4 * (7 * mb + nb)
                    for r in range(4):
                        I("v_mul_f32 v%d, v%d, v%d" % (a + r, a + r, vRow + 2 * mb))
                    for r in range(4):
                        I("v_fmac_f32 v%d, v%d, v%d" % (a + r, vE + 4 * nb + r, vRow + 2 * mb + 1))
                    gelu4(a)
                    stf16(a, vT + 8 + mb, nb, vPk + 16 * mb, 7)
        if idx == 7:
            srd(k, sX, sPtr + 4, sPtr + 5, 2048 * 640 * 2)
            for nb in range(5):
                a = vAcc + 4 * nb
                for r in range(4):
                    I("v_fma_f32 v%d, v%d, v%d, v%d" % (a + r, a + r, vE + 4 * nb + r, vX2 + 4 * nb + r))
                pk = vPk + 2 * nb
                I("v_cvt_pk_bf16_f32 v%d, v%d, v%d" % (pk, a, a + 1))
                I("v_cvt_pk_bf16_f32 v%d, v%d, v%d" % (pk + 1, a + 2, a + 3))
                I("buffer_store_dwordx2 %s, v%d, s[%d:%d], 0 offen offset:%d" % (vr(pk, 2), vRM4 if nb == 4 else vRM, sX, sX + 3, 0 if nb == 4 else 32 * nb))
    def setup6():
        I("s_and_b32 s%d, s%d, 1" % (sT2, sW4))
        I("s_lshl_b32 s%d, s%d, 1" % (sT2, sT2))
        I("s_lshl_b32 s%d, s%d, 2" % (sR2, sRb))
        I("s_add_u32 s%d, s%d, s%d" % (sR2, sR2, sT2))
        I("s_lshr_b32 s%d, s%d, 1" % (sT3, sW4))
        I("s_lshl_b32 s%d, s%d, 3" % (sT0, sT3))
        I("s_add_u32 s%d, s%d, s%d" % (sT1, sNb14, sT0))
        I("s_lshl_b32 s%d, s%d, 9" % (sOff, sT1))
        I("s_lshl_b32 s%d, s%d, 9" % (sOff + 1, sNb14))
        I("s_add_u32 s%d, s%d, s%d" % (sOff + 1, sOff + 1, sT0))
        I("s_add_u32 s%d, s%d, 3072" % (sOff + 1, sOff + 1))
        I("v_and_b32 v%d, 0x30, v%d" % (vT, vLane))
        I("s_lshl_b32 s%d, s%d, 6" % (sT1, sT1))
        I("v_add_u32 v%d, s%d, v%d" % (vVec, sT1, vT))
        I("s_add_u32 s%d, s%d, s%d" % (sT1, sNb14, sT3))
        I("s_add_u32 s%d, s%d, 6" % (sT1, sT1))
        I("s_lshl_b32 s%d, s%d, 6" % (sT1, sT1))
        I("v_add_u32 v%d, s%d, v%d" % (vVec4, sT1, vT))
        I("s_mul_i32 s%d, s%d, %d" % (sT0, sR2, 54 * K))
        I("v_add_u32 v%d, s%d, v%d" % (vFo, sT0, vL16))
        I("s_lshl_b32 s%d, s%d, 11" % (sT0, sT2))
        I("s_add_u32 s%d, s%d, %d" % (sT0, sT0, 80 * K))
        I("v_add_u32 v%d, s%d, v%d" % (vAa, sT0, vL16))
        I("v_add_u32 v%d, 65536, v%d" % (vAa + 1, vAa))
        I("s_mul_i32 s%d, s%d, 7168" % (sT0, sT3))
        I("v_add_u32 v%d, s%d, v%d" % (vA, sT0, vL16))
        I("v_add_u32 v%d, 65536, v%d" % (vA + 1, vA))
    def capture(fn, *args):
        n0 = len(k.items)
        fn(*args)
        out = k.items[n0:]; del k.items[n0:]
        return out

    for gi, g in enumerate(G):
        idx, KS, kpt = g["idx"], g["KS"], g["kpt"]
        big = g["NBT"] == 14
        MB, NW = (2, 7) if big else (1, 5)
        NF = MB + NW
        NBUF = 2 if big else 3
        PF = NBUF - 1
        if idx == 6: setup6()
        if idx == 7: setup80()
        pre_loads(idx, False)
        def rd(ks):
            t = g["T0"] + ks // kpt; j = ks % kpt
            b = vFr + 4 * NF * (ks % NBUF)
            o = []
            for mb in range(MB):
                off = slot[(t, "A")] - 80 * K + mb * kpt * K + j * K
                o.append("ds_read_b128 %s, v%d offset:%d" % (vr(b + 4 * mb, 4), vAa + off // 65536, off % 65536))
            for nb in range(NW):
                off = slot[(t, "W")] + j * g["NBT"] * K + nb * K
                hi = 1 if off >= 57344 + 8192 else 0
                o.append("ds_read_b128 %s, v%d offset:%d" % (vr(b + 4 * (MB + nb), 4), vA + hi, off - 65536 * hi))
            return o
        def mfs(ks):
            b = vFr + 4 * NF * (ks % NBUF)
            o = []
            for nb in range(NW):
                for mb in range(MB):
                    acc = vr(vAcc + 4 * (NW * mb + nb), 4)
                    o.append("v_mfma_f32_16x16x32_bf16 %s, %s, %s, %s" % (acc, vr(b + 4 * (MB + nb), 4), vr(b + 4 * mb, 4), "0" if ks == 0 else acc))
            return o
        I("s_barrier")
        st.stamp()
        for ks in range(PF):
            for x in rd(ks): I(x)
        pre_loads(idx, True)
        side = capture(cst_stats) if idx == 3 else capture(row_scalars, idx)
        k0 = 8 if idx in (3, 4, 6) else 1
        nslots = (min(KS, k0 + 40) - 1 - k0) * MB * NW
        sper = -(-len(side) // nslots)
        for ks in range(KS):
            nk = ks + PF
            if nk < KS and nk % kpt == 0:
                I("s_waitcnt lgkmcnt(0)")
                I("s_barrier")
            else:
                I("s_waitcnt lgkmcnt(%d)" % (NF * min(PF - 1, KS - 1 - ks)))
            r = rd(nk) if nk < KS else []
            mf = mfs(ks)
            per = 2 if not big else 1
            for m_ in mf:
                I(m_)
                for x in r[:per]: I(x)
                r = r[per:]
                if ks >= k0:
                    k.items += side[:sper]; side = side[sper:]
            assert not r
        assert not side
        st.stamp()
        vm.wait("e")
        epilogue(idx)
        if idx != 7: signal(gi)
    st.stamp()
    st.dump(sWS, sWv, vT, sT0, 8, region=2)
    k.label(L_end)
    I("s_endpgm")
    return k
```

```python
from fw import *
from layout import *
from k1 import srd, BIG

GC1 = -2.0 * math.sqrt(2.0 / math.pi) * LOG2E
GC2 = GC1 * 0.044715

PD = int(os.environ.get("PD", "3"))
CFG = {
    3: dict(KS=128, NB=5, MB=1, pw=WS_PWO, NBG=40, act=WS_CTX),
    4: dict(KS=20, NB=5, MB=1, pw=WS_PW1, NBG=40, act=WS_Y),
    5: dict(KS=20, NB=5, MB=1, pw=WS_PW2, NBG=40, act=WS_HH),
    6: dict(KS=20, NB=7, MB=2, pw=WS_PW3, NBG=108, act=WS_X1),
    7: dict(KS=54, NB=5, MB=1, pw=WS_PW4, NBG=40, act=WS_U),
}

def gen_gemm(idx):
    c = CFG[idx]
    KS, NB, MB, NBG = c["KS"], c["NB"], c["MB"], c["NBG"]
    R = PD; D = 4 * PD + 1
    NST = (KS + 3) // 4
    KB = NB * 1024
    SB_ = 4 * KB
    k = Kern("k%d_kernel" % idx, 256, 256, max(R * SB_, int(os.environ.get("MINLDS", "86016"))))
    I = k.I
    vm = Cnt(k, "vmcnt", 63)
    sW, sWS, sX = 8, 12, 16
    sWv, sRb, sNt, sNb0, sT0, sT1, sT2, sT3, sSo, sM0b, sWo = 20, 21, 22, 23, 24, 25, 26, 27, 28, 29, 30
    sOff = 32
    sPtr = 40
    sC1, sC2 = 48, 49
    p = 0
    def alloc(n, al=1):
        nonlocal p
        p = (p + al - 1) // al * al
        r = p; p += n
        return r
    alloc(1)
    vAcc = alloc(MB * NB * 4, 4)
    vSp = alloc(60, 4) if idx in (4, 6) else None
    aWf = 0
    aAct = 2 * NB * 4
    aSpB = aAct + D * MB * 4
    vPk = alloc(28, 4)
    vS8_ = alloc(16, 4)
    vA = alloc(3)
    vAo = alloc(4)
    vLane, vL16, vVec, vFo = alloc(1), alloc(1), alloc(1), alloc(MB)
    vT = alloc(12, 4)
    vE = alloc(32 if idx in (4, 6) else 64, 4)
    vRow = alloc(8, 4)
    vSpo = alloc(1)
    L_end = "k%d_end" % idx
    I("s_cmp_ge_u32 s2, 256")
    I("s_cbranch_scc1 %s" % L_end)
    st = Stamps(k, 60, 16)
    st.stamp(True); st.stamp()
    I("s_load_dwordx2 s[%d:%d], s[0:1], %d" % (sPtr + 2, sPtr + 3, KA_WS))
    if idx == 3: I("s_load_dwordx2 s[%d:%d], s[0:1], %d" % (sPtr + 4, sPtr + 5, KA_X))
    if idx == 7: I("s_load_dwordx2 s[%d:%d], s[0:1], %d" % (sPtr + 4, sPtr + 5, KA_OUT))
    I("v_lshrrev_b32 v%d, 6, v0" % vT)
    I("v_and_b32 v%d, 63, v0" % vLane)
    I("v_readfirstlane_b32 s%d, v%d" % (sWv, vT))
    I("v_lshlrev_b32 v%d, 4, v%d" % (vL16, vLane))
    I("s_and_b32 s%d, s2, 7" % sT0)
    I("s_lshr_b32 s%d, s2, 3" % sT1)
    if MB == 1:
        I("s_and_b32 s%d, s%d, 3" % (sRb, sT1))
        I("s_lshl_b32 s%d, s%d, 2" % (sT0, sT0))
        I("s_add_u32 s%d, s%d, s%d" % (sRb, sRb, sT0))
        I("s_lshr_b32 s%d, s2, 5" % sNt)
        I("s_mul_i32 s%d, s%d, 5" % (sNb0, sNt))
    else:
        I("s_and_b32 s%d, s%d, 1" % (sRb, sT1))
        I("s_lshl_b32 s%d, s%d, 1" % (sT0, sT0))
        I("s_add_u32 s%d, s%d, s%d" % (sRb, sRb, sT0))
        I("s_lshr_b32 s%d, s2, 4" % sNt)
        I("s_mul_i32 s%d, s%d, 7" % (sNb0, sNt))
        I("s_min_u32 s%d, s%d, 101" % (sNb0, sNb0))
    I("s_lshl_b32 s%d, s%d, 2" % (sT0, sRb))
    I("s_add_u32 s%d, s%d, s%d" % (sT0, sT0, sWv))
    I("s_mul_i32 s%d, s%d, %d" % (sRb, sT0, MB))
    I("s_mul_i32 s%d, s%d, %d" % (sM0b, sWv, KB))
    I("s_mul_i32 s%d, s%d, %d" % (sWo, sWv, NBG))
    I("s_add_u32 s%d, s%d, s%d" % (sWo, sWo, sNb0))
    I("s_lshl_b32 s%d, s%d, 10" % (sWo, sWo))
    I("s_add_u32 s%d, s%d, 0x%x" % (sWo, sWo, c["pw"]))
    if idx != 5:
        for mb in range(MB):
            I("s_add_u32 s%d, s%d, %d" % (sT0, sRb, mb))
            I("s_mul_i32 s%d, s%d, %d" % (sT0, sT0, KS * 1024))
            I("s_add_u32 s%d, s%d, 0x%x" % (sT0, sT0, c["act"]))
            I("v_add_u32 v%d, s%d, v%d" % (vAo + mb, sT0, vL16))
    else:
        I("v_and_b32 v%d, 15, v%d" % (vT, vLane))
        I("s_lshl_b32 s%d, s%d, 4" % (sT0, sRb))
        I("v_add_u32 v%d, s%d, v%d" % (vT, sT0, vT))
        I("v_and_b32 v%d, 0x300, v%d" % (vT + 1, vL16))
        I("v_add_u32 v%d, 0x%x, v%d" % (vT + 1, c["act"], vT + 1))
        I("v_mov_b32 v%d, 0x%x" % (vT + 4, BIG))
        for gi, dl in enumerate((-1, 1, -2, 2)):
            I("v_add_u32 v%d, %d, v%d" % (vT + 2, dl, vT))
            I("v_cmp_gt_u32 vcc, 2048, v%d" % (vT + 2))
            I("v_lshrrev_b32 v%d, 4, v%d" % (vT + 3, vT + 2))
            I("v_mul_u32_u24 v%d, 20480, v%d" % (vT + 3, vT + 3))
            I("v_and_b32 v%d, 15, v%d" % (vT + 2, vT + 2))
            I("v_lshl_add_u32 v%d, v%d, 4, v%d" % (vT + 3, vT + 2, vT + 3))
            I("v_add_u32 v%d, v%d, v%d" % (vT + 3, vT + 3, vT + 1))
            I("v_cndmask_b32 v%d, v%d, v%d, vcc" % (vAo + gi, vT + 4, vT + 3))
    I("s_waitcnt lgkmcnt(0)")
    srd(k, sWS, sPtr + 2, sPtr + 3, WS_SIZE)

    def dmaW(s):
        base = (s % R) * SB_
        for i in range(NB):
            if i % 4 == 0:
                I("s_add_u32 m0, s%d, %d" % (sM0b, base + 1024 * i))
                I("s_add_u32 s%d, s%d, %d" % (sSo, sWo, s * 4 * NBG * 1024 + 1024 * i))
            I("buffer_load_dwordx4 v%d, s[%d:%d], s%d offen offset:%d lds" % (vL16, sWS, sWS + 3, sSo, 1024 * (i % 4))); vm.issue("w%d" % s)
    def ldact(ks):
        I("s_mov_b32 s%d, %d" % (sSo, ks * 1024))
        for mb in range(MB):
            va = vAo + (ks // 5 if idx == 5 else mb)
            I("buffer_load_dwordx4 %s, v%d, s[%d:%d], s%d offen" % (ar(aAct + 4 * (MB * (ks % D) + mb), 4), va, sWS, sWS + 3, sSo)); vm.issue("a%d" % ks)
    nact = 0
    npre = min(R, NST)
    for s in range(npre):
        dmaW(s)
        for ks in range(4 * s, min(4 * s + 4, KS, D - 1)):
            ldact(ks); nact = ks + 1
        if s == 1:
            I("v_mov_b32 v%d, v%d" % (vA, vL16))
            I("v_add_u32 v%d, 65536, v%d" % (vA + 1, vA))
            I("v_add_u32 v%d, 131072, v%d" % (vA + 2, vA))
            for nb in range(NB):
                I("s_add_u32 s%d, s%d, %d" % (sT0, sNb0, nb))
                I("s_lshr_b32 s%d, s%d, 1" % (sT1, sT0))
                I("s_lshl_b32 s%d, s%d, 10" % (sT1, sT1))
                I("s_and_b32 s%d, s%d, 1" % (sT0, sT0))
                I("s_lshl_b32 s%d, s%d, 3" % (sT0, sT0))
                I("s_add_u32 s%d, s%d, s%d" % (sOff + nb, sT0, sT1))
            I("v_lshrrev_b32 v%d, 4, v%d" % (vT, vLane))
            I("s_lshl_b32 s%d, s%d, 6" % (sT0, sNb0))
            I("v_lshlrev_b32 v%d, 4, v%d" % (vVec, vT))
            I("v_add_u32 v%d, s%d, v%d" % (vVec, sT0, vVec))
            OKS = 54 if idx == 6 else 20
            for mb in range(MB):
                I("s_add_u32 s%d, s%d, %d" % (sT0, sRb, mb))
                I("s_mul_i32 s%d, s%d, %d" % (sT0, sT0, OKS * 1024))
                I("v_add_u32 v%d, s%d, v%d" % (vFo + mb, sT0, vL16))
            if idx in (3, 7): srd(k, sX, sPtr + 4, sPtr + 5, 2048 * 640 * 2)
    st.stamp()
    def ldvec(dst, seg, base=None):
        I("s_mov_b32 s%d, %d" % (sSo, WS_MOD + seg * 2560 if base is None else base))
        for nb in range(NB):
            I("buffer_load_dwordx4 %s, v%d, s[%d:%d], s%d offen offset:%d" % (vr(dst + 4 * nb, 4), vVec, sWS, sWS + 3, sSo, 64 * nb)); vm.issue("e")
    def ldf16(dst, base):
        I("v_add_u32 v%d, 0x%x, v%d" % (vT + 8, base, vFo))
        for nb in range(NB):
            I("buffer_load_dwordx2 %s, v%d, s[%d:%d], s%d offen" % (vr(dst + 2 * nb, 2), vT + 8, sWS, sWS + 3, sOff + nb)); vm.issue("e")
    def rowoff(dst, mul, mb=0):
        I("v_and_b32 v%d, 15, v%d" % (dst, vLane))
        I("s_add_u32 s%d, s%d, %d" % (sT0, sRb, mb))
        I("s_lshl_b32 s%d, s%d, 4" % (sT0, sT0))
        I("v_add_u32 v%d, s%d, v%d" % (dst, sT0, dst))
        I("v_mul_u32_u24 v%d, %d, v%d" % (dst, mul, dst))
    vRM = vRow + 7
    def allred(v, tmp):
        for sw in ("v_permlane16_swap_b32", "v_permlane32_swap_b32"):
            I("v_mov_b32 v%d, v%d" % (tmp, v))
            I("%s v%d, v%d" % (sw, v, tmp))
            I("v_add_f32 v%d, v%d, v%d" % (v, v, tmp))
    def pre_epilogue():
        if idx in (3, 7):
            rowoff(vRM, 1280)
            I("v_lshrrev_b32 v%d, 1, v%d" % (vT, vVec))
            I("v_add_u32 v%d, v%d, v%d" % (vRM, vRM, vT))
        if idx == 3:
            ldvec(vE, 2); ldvec(vE + 20, 4); ldvec(vE + 40, 3)
        if idx == 4:
            for j in range(3): ldvec(vSp + 20 * j, 0, WS_V1 + 2560 * j)
            rowoff(vT + 8, 256)
            I("v_and_b32 v%d, 0x30, v%d" % (vT, vLane))
            I("v_lshlrev_b32 v%d, 2, v%d" % (vT, vT))
            I("v_add_u32 v%d, v%d, v%d" % (vT + 8, vT + 8, vT))
            I("s_mov_b32 s%d, 0x%x" % (sSo, WS_ST1))
            for i in range(4):
                I("buffer_load_dwordx4 %s, v%d, s[%d:%d], s%d offen offset:%d" % (vr(vE + 4 * i, 4), vT + 8, sWS, sWS + 3, sSo, 16 * i)); vm.issue("e")
            I("s_mov_b32 s%d, 0x%x" % (sSo, WS_ST1 + 2048 * 256))
            for i in range(4):
                I("buffer_load_dwordx4 %s, v%d, s[%d:%d], s%d offen offset:%d" % (vr(vE + 16 + 4 * i, 4), vT, sWS, sWS + 3, sSo, 16 * i)); vm.issue("e")
        if idx == 5:
            ldvec(vE, 4); ldvec(vE + 20, 3); ldf16(vE + 40, WS_X2)
            rowoff(vT + 8, 8)
            I("s_mov_b32 s%d, 0x%x" % (sSo, WS_MU))
            I("buffer_load_dwordx2 %s, v%d, s[%d:%d], s%d offen" % (vr(vRow, 2), vT + 8, sWS, sWS + 3, sSo)); vm.issue("e")
        if idx == 6:
            ldvec(vSp, 0, WS_V3 + 2 * 6912)
            for mb in range(MB):
                rowoff(vT + 8, 64, mb)
                I("v_and_b32 v%d, 0x30, v%d" % (vT, vLane))
                I("v_add_u32 v%d, v%d, v%d" % (vT + 8, vT + 8, vT))
                I("s_mov_b32 s%d, 0x%x" % (sSo, WS_ST2))
                I("buffer_load_dwordx4 %s, v%d, s[%d:%d], s%d offen" % (vr(vE + 4 * mb, 4), vT + 8, sWS, sWS + 3, sSo)); vm.issue("e")
        if idx == 7:
            ldvec(vE, 5); ldf16(vE + 20, WS_X2); ldf16(vE + 30, WS_X1)
    vXl = alloc(10, 2) if idx == 3 else None
    def pre_x():
        for nb in range(NB):
            I("buffer_load_dwordx2 %s, v%d, s[%d:%d], 0 offen offset:%d" % (vr(vXl + 2 * nb, 2), vRM, sX, sX + 3, 32 * nb)); vm.issue("e")
    INV = f32bits(1.0 / 640)
    def row_scalars():
        if idx == 4:
            vm.wait("e")
            for base in (vE, vE + 16):
                for i in range(6):
                    I("v_add_f32 v%d, v%d, v%d" % (base + i, base + i, base + 8 + i))
                    I("v_mul_f32 v%d, 0x%x, v%d" % (base + i, INV, base + i))
                for i in range(6 if base == vE else 5): allred(base + i, vT + (i % 4))
            mx, mxx, my, myy, myg, mysb = [vE + i for i in range(6)]
            cg, csb, cgg, cgsb, csbsb = [vE + 16 + i for i in range(5)]
            mu1, r1, t, u, mu2, r2 = vRow + 4, vRow + 5, vT, vT + 1, vT + 2, vT + 3
            I("v_mov_b32 v%d, v%d" % (mu1, mx))
            I("v_fma_f32 v%d, -v%d, v%d, v%d" % (t, mx, mx, mxx))
            I("v_max_f32 v%d, 0, v%d" % (t, t))
            I("v_add_f32 v%d, 0x%x, v%d" % (t, f32bits(1e-5), t))
            I("v_rsq_f32 v%d, v%d" % (r1, t))
            I("v_fma_f32 v%d, -v%d, v%d, v%d" % (t, mu1, cg, my))
            I("v_fma_f32 v%d, v%d, v%d, v%d" % (mu2, r1, t, csb))
            I("v_add_f32 v%d, v%d, v%d" % (t, myg, myg))
            I("v_fma_f32 v%d, -v%d, v%d, v%d" % (t, mu1, cgg, t))
            I("v_fma_f32 v%d, -v%d, v%d, v%d" % (t, mu1, t, myy))
            I("v_fma_f32 v%d, -v%d, v%d, v%d" % (u, mu1, cgsb, mysb))
            I("v_add_f32 v%d, v%d, v%d" % (u, u, u))
            I("v_fma_f32 v%d, v%d, v%d, v%d" % (t, r1, t, u))
            I("v_fma_f32 v%d, v%d, v%d, v%d" % (t, r1, t, csbsb))
            I("v_fma_f32 v%d, -v%d, v%d, v%d" % (t, mu2, mu2, t))
            I("v_max_f32 v%d, 0, v%d" % (t, t))
            I("v_add_f32 v%d, 0x%x, v%d" % (t, f32bits(1e-5), t))
            I("v_rsq_f32 v%d, v%d" % (r2, t))
            I("v_mul_f32 v%d, v%d, v%d" % (vRow, r1, r2))
            I("v_mul_f32 v%d, v%d, v%d" % (vRow + 1, vRow, mu1))
            I("v_sub_f32 v%d, 0, v%d" % (vRow + 1, vRow + 1))
            I("v_mov_b32 v%d, v%d" % (vRow + 2, r2))
            I("v_mul_f32 v%d, v%d, v%d" % (vRow + 3, r2, mu2))
            I("v_sub_f32 v%d, 0, v%d" % (vRow + 3, vRow + 3))
            rowoff(vT + 8, 8)
            I("s_cmp_eq_u32 s%d, 0" % sNt)
            I("s_cselect_b32 s%d, 0x%x, 0x%x" % (sT0, WS_MU, BIG)) if False else None
            I("s_mov_b32 s%d, 0x%x" % (sT1, BIG))
            I("s_cselect_b32 s%d, 0x%x, s%d" % (sT0, WS_MU, sT1))
            I("v_add_u32 v%d, s%d, v%d" % (vT + 8, sT0, vT + 8))
            I("buffer_store_dwordx2 %s, v%d, s[%d:%d], 0 offen" % (vr(vRow + 4, 2), vT + 8, sWS, sWS + 3)); vm.issue("mu")
        if idx == 6:
            vm.wait("e")
            for mb in range(MB):
                b = vE + 4 * mb
                for i in range(2):
                    I("v_add_f32 v%d, v%d, v%d" % (b + i, b + i, b + 2 + i))
                    I("v_mul_f32 v%d, 0x%x, v%d" % (b + i, INV, b + i))
                    allred(b + i, vT + i)
                I("v_fma_f32 v%d, -v%d, v%d, v%d" % (vT, b, b, b + 1))
                I("v_max_f32 v%d, 0, v%d" % (vT, vT))
                I("v_add_f32 v%d, 0x%x, v%d" % (vT, f32bits(1e-5), vT))
                I("v_rsq_f32 v%d, v%d" % (vRow + 2 * mb, vT))
                I("v_mul_f32 v%d, v%d, v%d" % (vRow + 2 * mb + 1, vRow + 2 * mb, b))
                I("v_sub_f32 v%d, 0, v%d" % (vRow + 2 * mb + 1, vRow + 2 * mb + 1))
    I("s_mov_b32 s%d, 0x%x" % (sC1, f32bits(GC1)))
    I("s_mov_b32 s%d, 0x%x" % (sC2, f32bits(GC2)))

    def rdW(ks):
        o = []
        kb = ((ks // 4) % R) * SB_ + (ks % 4) * KB
        for nb in range(NB):
            off = kb + nb * 1024
            o.append("ds_read_b128 %s, v%d offset:%d" % (ar(aWf + 4 * NB * (ks & 1) + 4 * nb, 4), vA + off // 65536, off % 65536))
        return o
    def mfs(ks):
        o = []
        for nb in range(NB):
            wf = ar(aWf + 4 * NB * (ks & 1) + 4 * nb, 4)
            for mb in range(MB):
                acc = vr(vAcc + 4 * (NB * mb + nb), 4)
                o.append("v_mfma_f32_16x16x32_bf16 %s, %s, %s, %s" % (acc, wf, ar(aAct + 4 * (MB * (ks % D) + mb), 4), "0" if ks == 0 else acc))
        return o
    vm.wait("w0")
    I("s_barrier")
    st.stamp()
    for x in rdW(0): I(x)
    nst_issued = npre
    for ks in range(KS):
        vm.wait("a%d" % ks)
        I("s_waitcnt lgkmcnt(0)")
        if (ks + 1) % 4 == 0 and ks + 1 < KS:
            s = (ks + 1) // 4
            vm.wait("w%d" % s)
            I("s_barrier")
            if nst_issued < NST:
                dmaW(nst_issued); nst_issued += 1
        rd = rdW(ks + 1) if ks + 1 < KS else []
        mf = mfs(ks)
        per = -(-len(rd) // len(mf)) if rd else 0
        per = max(per, 2) if rd else 0
        for m_ in mf:
            for x in rd[:per]: I(x)
            rd = rd[per:]
            I(m_)
        if nact < KS:
            ldact(nact); nact += 1
        if ks == max(0, KS - 16):
            pre_epilogue()
            if idx == 3: pre_x()
        if ks == KS - 4: row_scalars()
    st.stamp()
    def gelu(v, t):
        I("v_mul_f32 v%d, v%d, v%d" % (t, v, v))
        I("v_fma_f32 v%d, v%d, s%d, v%d" % (t, t, sC2, vRow + 6))
        I("v_mul_f32 v%d, v%d, v%d" % (t, t, v))
        I("v_exp_f32 v%d, v%d" % (t, t))
        I("v_add_f32 v%d, 1.0, v%d" % (t, t))
        I("v_rcp_f32 v%d, v%d" % (t, t))
        I("v_mul_f32 v%d, v%d, v%d" % (v, v, t))
    def gelu4(vs):
        ts = [vT + i for i in range(4)]
        for v, t in zip(vs, ts): I("v_mul_f32 v%d, v%d, v%d" % (t, v, v))
        for v, t in zip(vs, ts): I("v_fma_f32 v%d, v%d, s%d, v%d" % (t, t, sC2, vRow + 6))
        for v, t in zip(vs, ts): I("v_mul_f32 v%d, v%d, v%d" % (t, t, v))
        for v, t in zip(vs, ts): I("v_exp_f32 v%d, v%d" % (t, t))
        for v, t in zip(vs, ts): I("v_add_f32 v%d, 1.0, v%d" % (t, t))
        for v, t in zip(vs, ts): I("v_rcp_f32 v%d, v%d" % (t, t))
        for v, t in zip(vs, ts): I("v_mul_f32 v%d, v%d, v%d" % (v, v, t))
    def unpack(dst, src):
        for q in range(2):
            I("v_lshlrev_b32 v%d, 16, v%d" % (dst + 2 * q, src + q))
            I("v_and_b32 v%d, 0xffff0000, v%d" % (dst + 2 * q + 1, src + q))
    def stf16(src4, addr, nb, pk):
        I("v_cvt_pk_bf16_f32 v%d, v%d, v%d" % (pk, src4, src4 + 1))
        I("v_cvt_pk_bf16_f32 v%d, v%d, v%d" % (pk + 1, src4 + 2, src4 + 3))
        I("buffer_store_dwordx2 %s, v%d, s[%d:%d], s%d offen" % (vr(pk, 2), addr, sWS, sWS + 3, sOff + nb))
    def red4(a, b, cc, d):
        I("v_permlane16_swap_b32 v%d, v%d" % (a, b))
        I("v_permlane16_swap_b32 v%d, v%d" % (cc, d))
        I("v_add_f32 v%d, v%d, v%d" % (a, a, b))
        I("v_add_f32 v%d, v%d, v%d" % (cc, cc, d))
        I("v_permlane32_swap_b32 v%d, v%d" % (a, cc))
        I("v_add_f32 v%d, v%d, v%d" % (a, a, cc))
    vm.wait("e")
    vS8 = vS8_
    if idx in (4, 6): I("v_mov_b32 v%d, s%d" % (vRow + 6, sC1))
    if idx == 3:
        I("v_add_u32 v%d, 0x%x, v%d" % (vT + 8, WS_X2, vFo))
        I("v_add_u32 v%d, 0x%x, v%d" % (vT + 9, WS_Y, vFo))
        for i in range(8): I("v_mov_b32 v%d, 0" % (vS8 + i))
        for nb in range(NB):
            a = vAcc + 4 * nb
            unpack(vT, vXl + 2 * nb)
            for r in range(4):
                I("v_fma_f32 v%d, v%d, v%d, v%d" % (a + r, a + r, vE + 4 * nb + r, vT + r))
                I("v_mul_f32 v%d, v%d, v%d" % (vT + 4 + r, a + r, vE + 20 + 4 * nb + r))
            stf16(a, vT + 8, nb, vPk + 4 * nb)
            stf16(vT + 4, vT + 9, nb, vPk + 4 * nb + 2)
            for r in range(4):
                y = vT + 4 + r
                I("v_add_f32 v%d, v%d, v%d" % (vS8, vS8, a + r))
                I("v_fmac_f32 v%d, v%d, v%d" % (vS8 + 1, a + r, a + r))
                I("v_add_f32 v%d, v%d, v%d" % (vS8 + 2, vS8 + 2, y))
                I("v_fmac_f32 v%d, v%d, v%d" % (vS8 + 3, y, y))
                I("v_fmac_f32 v%d, v%d, v%d" % (vS8 + 4, y, vE + 20 + 4 * nb + r))
                I("v_fmac_f32 v%d, v%d, v%d" % (vS8 + 5, y, vE + 40 + 4 * nb + r))
        def st_stats(rowreg):
            red4(vS8, vS8 + 1, vS8 + 2, vS8 + 3)
            red4(vS8 + 4, vS8 + 5, vS8 + 6, vS8 + 7)
            I("v_lshrrev_b32 v%d, 4, v%d" % (vT, vLane))
            I("v_lshl_add_u32 v%d, v%d, 2, v%d" % (rowreg, vT, rowreg))
            I("s_lshl_b32 s%d, s%d, 5" % (sT0, sNt))
            I("s_add_u32 s%d, s%d, 0x%x" % (sT0, sT0, WS_ST1))
            I("buffer_store_dword v%d, v%d, s[%d:%d], s%d offen" % (vS8, rowreg, sWS, sWS + 3, sT0))
            I("buffer_store_dword v%d, v%d, s[%d:%d], s%d offen offset:16" % (vS8 + 4, rowreg, sWS, sWS + 3, sT0))
        rowoff(vT + 10, 256)
        st_stats(vT + 10)
        Lsk = k.newlabel("nocst")
        I("s_cmp_lg_u32 s%d, 0" % sRb)
        I("s_cbranch_scc1 %s" % Lsk)
        vS8 = vS8_ + 8
        for i in range(8): I("v_mov_b32 v%d, 0" % (vS8 + i))
        for j in range(20):
            g_, s_ = vE + 20 + j, vE + 40 + j
            I("v_add_f32 v%d, v%d, v%d" % (vS8, vS8, g_))
            I("v_add_f32 v%d, v%d, v%d" % (vS8 + 1, vS8 + 1, s_))
            I("v_fmac_f32 v%d, v%d, v%d" % (vS8 + 2, g_, g_))
            I("v_fmac_f32 v%d, v%d, v%d" % (vS8 + 3, g_, s_))
            I("v_fmac_f32 v%d, v%d, v%d" % (vS8 + 4, s_, s_))
        I("v_mov_b32 v%d, %d" % (vT + 10, 2048 * 256))
        st_stats(vT + 10)
        k.label(Lsk)
    if idx == 4:
        I("v_add_u32 v%d, 0x%x, v%d" % (vT + 8, WS_HH, vFo))
        for nb in range(NB):
            a = vAcc + 4 * nb
            for r in range(4):
                I("v_mul_f32 v%d, v%d, v%d" % (a + r, a + r, vRow))
            for j in range(3):
                for r in range(4):
                    I("v_fmac_f32 v%d, v%d, v%d" % (a + r, vSp + 20 * j + 4 * nb + r, vRow + 1 + j))
            gelu4([a + r for r in range(4)])
            stf16(a, vT + 8, nb, vPk + 2 * nb)
    if idx == 5:
        I("v_add_u32 v%d, 0x%x, v%d" % (vT + 8, WS_X1, vFo))
        for i in range(2): I("v_mov_b32 v%d, 0" % (vS8 + i))
        for nb in range(NB):
            a = vAcc + 4 * nb
            unpack(vT, vE + 40 + 2 * nb)
            for r in range(4):
                I("v_sub_f32 v%d, v%d, v%d" % (vT + r, vT + r, vRow))
                I("v_mul_f32 v%d, v%d, v%d" % (vT + r, vT + r, vRow + 1))
                I("v_fma_f32 v%d, v%d, v%d, v%d" % (vT + r, vT + r, vE + 4 * nb + r, vE + 20 + 4 * nb + r))
                I("v_add_f32 v%d, v%d, v%d" % (a + r, a + r, vT + r))
            stf16(a, vT + 8, nb, vPk + 2 * nb)
            for r in range(4):
                I("v_add_f32 v%d, v%d, v%d" % (vS8, vS8, a + r))
                I("v_fmac_f32 v%d, v%d, v%d" % (vS8 + 1, a + r, a + r))
        I("v_permlane16_swap_b32 v%d, v%d" % (vS8, vS8 + 1))
        I("v_add_f32 v%d, v%d, v%d" % (vS8, vS8, vS8 + 1))
        I("v_mov_b32 v%d, v%d" % (vS8 + 1, vS8))
        I("v_permlane32_swap_b32 v%d, v%d" % (vS8, vS8 + 1))
        I("v_add_f32 v%d, v%d, v%d" % (vS8, vS8, vS8 + 1))
        rowoff(vT + 10, 64)
        I("v_and_b32 v%d, 16, v%d" % (vT, vLane))
        I("v_lshrrev_b32 v%d, 2, v%d" % (vT, vT))
        I("v_add_u32 v%d, v%d, v%d" % (vT + 10, vT + 10, vT))
        I("s_lshl_b32 s%d, s%d, 3" % (sT0, sNt))
        I("s_add_u32 s%d, s%d, 0x%x" % (sT0, sT0, WS_ST2))
        I("buffer_store_dword v%d, v%d, s[%d:%d], s%d offen" % (vS8, vT + 10, sWS, sWS + 3, sT0))
    if idx == 6:
        for mb in range(MB):
            I("v_add_u32 v%d, 0x%x, v%d" % (vT + 8 + mb, WS_U, vFo + mb))
        for mb in range(MB):
            for nb in range(NB):
                a = vAcc + 4 * (NB * mb + nb)
                for r in range(4):
                    I("v_mul_f32 v%d, v%d, v%d" % (a + r, a + r, vRow + 2 * mb))
                for r in range(4):
                    I("v_fmac_f32 v%d, v%d, v%d" % (a + r, vSp + 4 * nb + r, vRow + 2 * mb + 1))
                gelu4([a + r for r in range(4)])
                stf16(a, vT + 8 + mb, nb, vPk + 2 * (NB * mb + nb))
    if idx == 7:
        for nb in range(NB):
            a = vAcc + 4 * nb
            unpack(vT, vE + 20 + 2 * nb)
            unpack(vT + 4, vE + 30 + 2 * nb)
            for r in range(4):
                I("v_add_f32 v%d, v%d, v%d" % (a + r, a + r, vT + 4 + r))
                I("v_fma_f32 v%d, v%d, v%d, v%d" % (a + r, a + r, vE + 4 * nb + r, vT + r))
            pk = vPk + 2 * nb
            I("v_cvt_pk_bf16_f32 v%d, v%d, v%d" % (pk, a, a + 1))
            I("v_cvt_pk_bf16_f32 v%d, v%d, v%d" % (pk + 1, a + 2, a + 3))
            I("buffer_store_dwordx2 %s, v%d, s[%d:%d], 0 offen offset:%d" % (vr(pk, 2), vRM, sX, sX + 3, 32 * nb))
    st.stamp()
    st.dump(sWS, sWv, vT, sT0, 4, region=idx - 1)
    k.label(L_end)
    I("s_endpgm")
    return k

def gen_back(which):
    return [gen_gemm(i) for i in (3, 4, 5, 6, 7) if str(i) in which]
```

```python
from fw import *
from layout import *
from k1 import srd, BIG
MATS = [(KA_WO, 1280, 10, 128, WS_PWO), (KA_W1, 1280, 10, 20, WS_PW1), (KA_W2, 1280, 10, 20, WS_PW2), (KA_W4, 1280, 10, 54, WS_PW4), (KA_W3, 3456, 27, 20, WS_PW3)]
NUNITS = sum(m[2] * m[3] for m in MATS)

class Packer:
    def __init__(self, k, sP, sR, sT, sWS, vLane, vA, vD):
        self.__dict__.update(locals())
    def load_ptrs(self):
        I = self.k.I
        for i, m in enumerate(MATS):
            I("s_load_dwordx2 s[%d:%d], s[0:1], %d" % (self.sP + 2 * i, self.sP + 2 * i + 1, m[0]))
    def setup(self, sLds):
        I = self.k.I; vA, vLane = self.vA, self.vLane
        I("v_lshrrev_b32 v%d, 3, v%d" % (vA, vLane))
        I("v_and_b32 v%d, 7, v%d" % (vA + 1, vLane))
        I("v_lshlrev_b32 v%d, 4, v%d" % (vA + 1, vA + 1))
        I("v_lshrrev_b32 v%d, 2, v%d" % (vA + 2, vLane))
        I("v_lshlrev_b32 v%d, 7, v%d" % (vA + 2, vA + 2))
        I("v_and_b32 v%d, 3, v%d" % (vA + 3, vLane))
        I("v_lshl_add_u32 v%d, v%d, 3, v%d" % (vA + 2, vA + 3, vA + 2))
        I("v_add_u32 v%d, s%d, v%d" % (vA + 2, sLds, vA + 2))
        I("v_lshlrev_b32 v%d, 4, v%d" % (vA + 3, vLane))
    def issue(self, sU, sLds, vOff):
        I = self.k.I; sT, sP, sR = self.sT, self.sP, self.sR
        base = 0
        I("s_mov_b32 s%d, s%d" % (sT, sU))
        I("s_mov_b32 s%d, s%d" % (sR, sP)); I("s_mov_b32 s%d, s%d" % (sR + 1, sP + 1))
        I("s_mov_b32 s%d, 0x%x" % (sR + 2, MATS[0][1] * 32 * MATS[0][3]))
        I("s_mov_b32 s%d, 0x%x" % (sT + 5, MATS[0][4]))
        for i in range(1, 5):
            base += MATS[i - 1][2] * MATS[i - 1][3]
            I("s_sub_u32 s%d, s%d, %d" % (sT + 1, sU, base))
            I("s_cmp_ge_u32 s%d, %d" % (sU, base))
            I("s_cselect_b32 s%d, s%d, s%d" % (sT, sT + 1, sT))
            I("s_cselect_b32 s%d, s%d, s%d" % (sR, sP + 2 * i, sR))
            I("s_cselect_b32 s%d, s%d, s%d" % (sR + 1, sP + 2 * i + 1, sR + 1))
            I("s_cselect_b32 s%d, 0x%x, s%d" % (sR + 2, MATS[i][1] * 32 * MATS[i][3], sR + 2))
            I("s_cselect_b32 s%d, 0x%x, s%d" % (sT + 5, MATS[i][4], sT + 5))
        I("s_cselect_b32 s%d, 3456, 1280" % (sT + 2)) if False else None
        I("s_mov_b32 s%d, 1280" % (sT + 2))
        I("s_cselect_b32 s%d, 3456, s%d" % (sT + 2, sT + 2))
        I("s_mov_b32 s%d, %d" % (sT + 3, -(-(1 << 20) // 10)))
        I("s_cselect_b32 s%d, %d, s%d" % (sT + 3, -(-(1 << 20) // 27), sT + 3))
        I("s_and_b32 s%d, s%d, 0xffff" % (sR + 1, sR + 1))
        I("s_mov_b32 s%d, 0x20000" % (sR + 3))
        I("s_lshl_b32 s%d, s%d, 12" % (sT + 1, sT))
        I("s_add_u32 s%d, s%d, s%d" % (sT + 5, sT + 5, sT + 1))
        I("s_mul_i32 s%d, s%d, s%d" % (sT + 3, sT + 3, sT))
        I("s_lshr_b32 s%d, s%d, 20" % (sT + 3, sT + 3))
        I("s_mul_i32 s%d, s%d, s%d" % (sT + 3, sT + 3, sT + 2))
        I("s_mul_i32 s%d, s%d, 31" % (sT + 3, sT + 3))
        I("s_lshl_b32 s%d, s%d, 7" % (sT + 1, sT))
        I("s_add_u32 s%d, s%d, s%d" % (sT + 3, sT + 3, sT + 1))
        I("v_mad_u32_u24 v%d, v%d, s%d, v%d" % (vOff, self.vA, sT + 2, self.vA + 1))
        I("s_lshl_b32 s%d, s%d, 3" % (sT + 2, sT + 2))
        I("s_sub_u32 s%d, s%d, 1024" % (sT + 2, sT + 2))
        I("s_mov_b32 m0, s%d" % sLds)
        for i in range(4):
            I("buffer_load_dwordx4 v%d, s[%d:%d], s%d offen offset:%d lds" % (vOff, sR, sR + 3, sT + 3, 1024 * i))
            if i < 3: I("s_add_u32 s%d, s%d, s%d" % (sT + 3, sT + 3, sT + 2))
    def finish(self):
        I = self.k.I
        for nb in range(4):
            for hf in range(2):
                I("ds_read_b64_tr_b16 %s, v%d offset:%d" % (vr(self.vD + 4 * nb + 2 * hf, 2), self.vA + 2, hf * 2048 + nb * 32))
        I("s_waitcnt lgkmcnt(0)")
        for nb in range(4):
            I("buffer_store_dwordx4 %s, v%d, s[%d:%d], s%d offen offset:%d" % (vr(self.vD + 4 * nb, 4), self.vA + 3, self.sWS, self.sWS + 3, self.sT + 5, 1024 * nb))

for upr in (10, 27):
    M = -(-(1 << 20) // upr)
    assert all((u * M) >> 20 == u // upr for u in range(1300))

def gen_kp():
    nwg = (NUNITS + 3) // 4
    k = Kern("kp_kernel", nwg, 256, 16384)
    I = k.I
    I("s_cmp_ge_u32 s2, %d" % nwg)
    I("s_cbranch_scc1 kp_end")
    P = Packer(k, 20, 8, 32, 12, 1, 2, 8)
    P.load_ptrs()
    I("s_load_dwordx2 s[30:31], s[0:1], %d" % KA_WS)
    I("v_lshrrev_b32 v2, 6, v0"); I("v_and_b32 v1, 63, v0"); I("v_readfirstlane_b32 s40, v2")
    I("s_lshl_b32 s41, s2, 2"); I("s_add_u32 s41, s41, s40"); I("s_lshl_b32 s42, s40, 12")
    P.setup(42)
    I("s_waitcnt lgkmcnt(0)")
    srd(k, 12, 30, 31, WS_SIZE)
    P.issue(41, 42, 6)
    I("s_waitcnt vmcnt(0)")
    P.finish()
    k.label("kp_end")
    I("s_endpgm")
    return k
```

```python
WS_MOD  = 0x0000000
WS_SPEC = 0x0008000
WS_VEC  = 0x000E000
WS_MU   = 0x0010000
WS_V1   = 0x0018000
WS_V3   = 0x001A000
WS_ST1  = 0x0020000
WS_ST2  = 0x00B0000
WS_FL   = 0x00E0000
WS_HF   = 0x0100000
WS_KV   = 0x0400000
WS_CTX  = 0x2400000
WS_X2   = 0x3400000
WS_Y    = 0x3700000
WS_HH   = 0x3A00000
WS_X1   = 0x3D00000
WS_U    = 0x4000000
WS_PWO  = 0x4800000
WS_PW1  = 0x4D00000
WS_PW2  = 0x4DD0000
WS_PW3  = 0x4EA0000
WS_PW4  = 0x50C0000
WS_SIZE = 0x10000000
KA_X, KA_CKV, KA_WQ, KA_WUK, KA_WUV, KA_WO, KA_BX, KA_W1, KA_W2, KA_W3, KA_W4, KA_C, KA_WMOD, KA_OUT, KA_DBG, KA_WS = [8 * i for i in range(16)]
import math, struct
def f32bits(x): return struct.unpack("<I", struct.pack("<f", x))[0]
LOG2E = math.log2(math.e)
QSCALE = LOG2E / math.sqrt(128.0)
```

```python
import sys
sys.path.insert(0, "gen")
from fw import *
from k1 import gen_k1
NAME = "adaLN_cond__compressed_kv_cla__mixer_s_mlp__prompt"
def header():
    ref = open("cdna_kernels/%s.s.ref" % NAME).read().split("\n")
    out = []
    for ln in ref:
        if ln.startswith(";") and "@launch" not in ln and "Override launch" not in ln and "grid=ceil" not in ln:
            out.append(ln)
        elif not ln.startswith(";"):
            break
    return "\n".join(out) + "\n"
def main(path, which):
    ks = []
    if "1" in which: ks.append(gen_k1())
    if "p" in which:
        from kp import gen_kp
        ks.append(gen_kp())
    if "2" in which:
        from k2 import gen_k2
        ks.append(gen_k2())
    if any(c in which for c in "34567"):
        from kg import gen_back
        ks += gen_back(which)
    if "b" in which:
        from kb import gen_kb
        ks.append(gen_kb())
    for k in ks:
        k.fix(verbose=("-v" in sys.argv))
        k.desc()
        print(k.name, "insns", len(k.items), "nops", k.nops_inserted, "v", k.maxreg("v") + 1, "a", k.maxreg("a") + 1, "s", k.maxreg("s") + 1)
    open(path, "w").write(build_file(header(), ks))
if __name__ == "__main__":
    main(sys.argv[1], sys.argv[2])
```
